```python
import torch

def _softmax(x, axis=-1):
    return torch.softmax(x, dim=axis)
def _gelu(x):
    return torch.nn.functional.gelu(x, approximate="tanh")
def _silu(x):
    return torch.nn.functional.silu(x)
def _sigmoid(x):
    return torch.sigmoid(x)
def _layernorm(x, axis=-1, eps=1e-5):
    m = x.mean(dim=axis, keepdim=True)
    v = x.var(dim=axis, keepdim=True, unbiased=False)
    return (x - m) / torch.sqrt(v + eps)
def _scatter_add(tgt, idx, src, axis=0):
    return tgt.clone().index_add_(axis, idx, src)
def _segment_sum(src, seg, n):
    out = torch.zeros((n,) + src.shape[1:], dtype=src.dtype)
    return out.index_add_(0, seg, src)
def _pad(x, pw):
    flat = tuple(v for pair in reversed(pw) for v in pair)
    return torch.nn.functional.pad(x, flat)

kernel_name = 'gated_mix__sliding_block_cached__dense_activation_silu__decode'

def setup_inputs():

    _w = (lambda a: (lambda t: t.to(torch.bfloat16) if t.is_floating_point() else t)(torch.as_tensor(a)))
    def _A_setup():
        B, Sq, D = 2, 1, 512
        Hq, Hkv, Sk, Dh = 32, 8, 32768, 128
        assert Hq % Hkv == 0, (Hq, Hkv)
        return {
            "x": _w((lambda *s: torch.randn(*s, dtype=torch.bfloat16) * 0.05)(B, Sq, D)),
            "k_cache": _w((lambda *s: torch.randn(*s, dtype=torch.bfloat16) * 6.4)(B, Hkv, Sk, Dh)),
            "v_cache": _w((lambda *s: torch.randn(*s, dtype=torch.bfloat16) * 0.8)(B, Hkv, Sk, Dh)),
            "wq": _w((lambda *s: torch.randn(*s, dtype=torch.bfloat16) * 6.4)(D, Hq * Dh) * (D ** -0.5)),
            "wo": _w((lambda *s: torch.randn(*s, dtype=torch.bfloat16) * 0.8)(Hq * Dh, D) * ((Hq * Dh) ** -0.5)),
        }
    _A_in = _A_setup()

    def _B_setup():
        B, S, D, F = 2, 1, 512, 1792
        return {
            "x": _w((lambda *s: torch.randn(*s, dtype=torch.bfloat16) * 0.05)(B, S, D)),
            "w1": _w((lambda *s: torch.randn(*s, dtype=torch.bfloat16) * 12.8)(D, F) * (D ** -0.5)),
            "w2": _w((lambda *s: torch.randn(*s, dtype=torch.bfloat16) * 0.4)(F, D) * (F ** -0.5)),
        }
    _B_in = _B_setup()

    return {
        "A_x": _A_in["x"],
        "A_k_cache": _A_in["k_cache"],
        "A_v_cache": _A_in["v_cache"],
        "A_wq": _A_in["wq"],
        "A_wo": _A_in["wo"],
        "B_x": _B_in["x"],
        "B_w1": _B_in["w1"],
        "B_w2": _B_in["w2"],
        "gate_w": _w((lambda *s: torch.randn(*s, dtype=torch.bfloat16) * 0.05)(512) * 16.0),
    }

def reference(A_x, A_k_cache, A_v_cache, A_wq, A_wo, B_x, B_w1, B_w2, gate_w):
    def _A_ref(x, k_cache, v_cache, wq, wo):
        B, Sq, D = x.shape
        Hq, Dh = 32, 128
        Hkv, Sk = k_cache.shape[1], k_cache.shape[2]
        W = min(4096, max(256, Sk // 4))
        rep = Hq // Hkv
        q = (lambda x, *d: x.permute(*d))((x @ wq).reshape(B, Sq, Hq, Dh), 0, 2, 1, 3)
        k = (lambda x, n, axis: torch.repeat_interleave(x, n, dim=axis))(k_cache[:, :, Sk - W:, :], rep, axis=1)
        v = (lambda x, n, axis: torch.repeat_interleave(x, n, dim=axis))(v_cache[:, :, Sk - W:, :], rep, axis=1)
        scores = torch.einsum("bhqd,bhkd->bhqk", q, k) * (Dh ** -0.5)
        p = _softmax(scores, axis=-1)
        o = torch.einsum("bhqk,bhkd->bhqd", p, v)
        return (lambda x, *d: x.permute(*d))(o, 0, 2, 1, 3).reshape(B, Sq, Hq * Dh) @ wo

    def _B_ref(x, w1, w2):
        h = torch.einsum("bsd,df->bsf", x, w1)
        h = _silu(h)
        out = torch.einsum("bsf,fd->bsd", h, w2)
        return out

    x = A_x
    g = _sigmoid((x * gate_w).sum(-1, keepdims=True))
    a = _A_ref(x, A_k_cache, A_v_cache, A_wq, A_wo)
    b = _B_ref(x, B_w1, B_w2)
    return g * a + (1 - g) * b
```

```python
import sys

KN = 'gated_mix__sliding_block_cached__dense_activation_silu__decode'

L_K = 0
L_V = 65536
L_WQ = L_V + 49152
L_W1 = L_V + 40960
L_WO = 131072
L_W2 = 147456
L_X = 155648
L_G = 157696
L_QST = 158720
L_HST = 159744
L_F = 160768
F_PROG = L_F
F_QRDY = L_F + 256
F_PRDY = L_F + 272
F_CONS = L_F + 288
F_OUT = L_F + 292
F_MX = L_F + 320
LDS_BYTES = 163840

W_EPOCH = 0
W_Q = 0x10000
W_O = 0x50000
W_ML = 0xD0000
W_H = 0xE0000
W_OUT = 0x120000
W_B = 0x200000
W_STAMP = 0x10000000

P_X = 1
P_WQ = 5
P_W1 = 7
P_K = 23
P_W2 = 25
P_V0 = 25
P_WO0 = 41
NGROUPS = 45

SPIN_LIMIT = 1 << 18
SCALE_C = 0x3e0293ee
LOG2E = 0x3fb8aa3b


class Gen:
    def __init__(self, stamps=False, depth=32, rotmul=20, na_rounds=2):
        self.L = []
        self.stamps = stamps
        self.depth = depth
        self.rotmul = rotmul
        self.na = na_rounds
        self.uid = 0
        self.nstamp = 0
        self.stampnames = {}

    def A(self, s):
        self.L.append('  ' + s)

    def lab(self, s):
        self.L.append(s + ':')

    def newlab(self, p):
        self.uid += 1
        return f'L_{p}_{self.uid}'

    def stamp(self, idx, name=None):
        if not self.stamps:
            return
        self.A('s_memrealtime s[98:99]')
        self.A('s_waitcnt lgkmcnt(0)')
        self.A(f'v_writelane_b32 v10, s98, {idx}')

    def wait_prog(self, thr):
        l = self.newlab('wp')
        d = self.newlab('wpd')
        self.A(f's_cmp_ge_u32 s39, {thr}')
        self.A(f's_cbranch_scc1 {d}')
        self.A(f's_mov_b32 s63, {SPIN_LIMIT}')
        self.lab(l)
        self.A('ds_read_b32 v9, v15')
        self.A('s_sub_u32 s63, s63, 1')
        self.A(f's_cbranch_scc1 {d}')
        self.A('s_waitcnt lgkmcnt(0)')
        self.A('v_readfirstlane_b32 s39, v9')
        self.A(f's_cmp_ge_u32 s39, {thr}')
        self.A(f's_cbranch_scc0 {l}')
        self.lab(d)

    def spin_begin(self, name):
        l = self.newlab(name)
        d = self.newlab(name + 'd')
        self.A(f's_mov_b32 s63, {SPIN_LIMIT}')
        self.lab(l)
        self.A('s_sub_u32 s63, s63, 1')
        self.A(f's_cbranch_scc1 {d}')
        return l, d

    def sum_rows(self, v, t, op='v_add_f32'):
        A = self.A
        A(f'v_mov_b32 v{t}, v{v}')
        A('s_nop 1')
        A(f'v_permlane16_swap_b32 v{v}, v{t}')
        A('s_nop 1')
        A(f'{op} v{v}, v{v}, v{t}')
        A(f'v_mov_b32 v{t}, v{v}')
        A('s_nop 1')
        A(f'v_permlane32_swap_b32 v{v}, v{t}')
        A('s_nop 1')
        A(f'{op} v{v}, v{v}, v{t}')

    def sum_rows_multi(self, vs, ts, op='v_add_f32'):
        A = self.A
        for swap in ('v_permlane16_swap_b32', 'v_permlane32_swap_b32'):
            for v, t in zip(vs, ts):
                A(f'v_mov_b32 v{t}, v{v}')
            A('s_nop 1')
            for v, t in zip(vs, ts):
                A(f'{swap} v{v}, v{t}')
            A('s_nop 1')
            for v, t in zip(vs, ts):
                A(f'{op} v{v}, v{v}, v{t}')

    def header(self):
        L = self.L
        L.append(f'; @launch grid=(256,1,1) block=(320,1,1) lds={LDS_BYTES}')
        L.append('.amdgcn_target "amdgcn-amd-amdhsa--gfx950"')
        L.append('.text')
        L.append(f'.globl {KN}_kernel')
        L.append('.p2align 8')
        L.append(f'.type {KN}_kernel,@function')
        L.append(f'{KN}_kernel:')

    def footer(self):
        L = self.L
        L.append('.section .rodata,"a"')
        L.append('.p2align 6')
        L.append(f'.amdhsa_kernel {KN}_kernel')
        L.append('  .amdhsa_next_free_vgpr 256')
        L.append('  .amdhsa_next_free_sgpr 102')
        L.append('  .amdhsa_accum_offset 256')
        L.append('  .amdhsa_group_segment_fixed_size 0')
        L.append('  .amdhsa_kernarg_size 96')
        L.append('  .amdhsa_user_sgpr_count 2')
        L.append('  .amdhsa_user_sgpr_kernarg_segment_ptr 1')
        L.append('  .amdhsa_system_sgpr_workgroup_id_x 1')
        L.append('.end_amdhsa_kernel')

    def prologue(self):
        A = self.A
        if self.stamps:
            A('s_memrealtime s[96:97]')
        A('s_cmp_ge_u32 s2, 256')
        A('s_cbranch_scc1 L_end')
        A('s_load_dwordx16 s[4:19], s[0:1], 0')
        A('s_load_dwordx8 s[20:27], s[0:1], 64')
        A('v_lshrrev_b32 v1, 6, v0')
        A('v_and_b32 v0, 63, v0')
        A('s_and_b32 s29, s2, 7')
        A('v_readfirstlane_b32 s28, v1')
        A('s_lshr_b32 s30, s2, 3')
        A('s_lshr_b32 s31, s30, 4')
        A('s_and_b32 s32, s30, 15')
        A('s_lshr_b32 s33, s30, 3')
        A('s_and_b32 s34, s30, 7')
        A('s_lshr_b32 s40, s29, 1')
        A('s_mul_i32 s40, s40, 7')
        A('s_and_b32 s41, s29, 1')
        A('s_lshl_b32 s42, s41, 2')
        A('s_add_u32 s40, s40, s42')
        A('s_sub_u32 s41, 4, s41')
        if self.stamps:
            A('v_mov_b32 v10, 0')
        A('s_cmp_eq_u32 s28, 4')
        A('s_cbranch_scc1 L_loader')

    def loader(self):
        A = self.A
        self.lab('L_loader')
        A('v_lshrrev_b32 v4, 4, v0')
        A('v_and_b32 v5, 15, v0')
        for q in range(4):
            A(f'v_add_u32 v6, {4*q}, v4')
            A('v_xor_b32 v6, v6, v5')
            A('v_lshlrev_b32 v6, 4, v6')
            A(f'v_lshl_add_u32 v{20+q}, v4, 8, v6')
        for q in range(2):
            A(f'v_add_u32 v6, {4*q}, v4')
            A('v_lshlrev_b32 v6, 1, v6')
            A('v_xor_b32 v6, v6, v5')
            A('v_lshlrev_b32 v6, 4, v6')
            A(f'v_lshl_add_u32 v{24+q}, v4, 8, v6')
        A('v_lshrrev_b32 v4, 3, v0')
        A('v_and_b32 v5, 7, v0')
        A('v_and_b32 v6, 2, v4')
        A('v_xor_b32 v5, v5, v6')
        A('v_lshlrev_b32 v5, 4, v5')
        A('v_xor_b32 v6, 64, v5')
        A('v_lshl_add_u32 v26, v4, 13, v5')
        A('v_lshl_add_u32 v27, v4, 13, v6')
        A('v_lshl_add_u32 v28, v4, 10, v5')
        A('v_lshl_add_u32 v29, v4, 10, v6')
        A('v_mul_u32_u24 v7, 3584, v4')
        A('v_add_u32 v30, v7, v5')
        A('v_add_u32 v31, v7, v6')
        A('v_lshlrev_b32 v3, 4, v0')
        A('v_lshlrev_b32 v15, 2, v0')
        A(f'v_add_u32 v15, {F_PROG}, v15')
        A('s_lshl_b32 s43, s31, 3')
        A('s_add_u32 s43, s43, s29')
        A('s_lshl_b32 s43, s43, 23')
        A('s_lshl_b32 s44, s32, 16')
        A('s_add_u32 s43, s43, s44')
        A('s_add_u32 s43, s43, 0x700000')
        A('s_lshl_b32 s44, s33, 20')
        A('s_lshl_b32 s45, s29, 10')
        A('s_add_u32 s44, s44, s45')
        A('s_lshl_b32 s45, s34, 7')
        A('s_add_u32 s44, s44, s45')
        A('s_lshl_b32 s46, s29, 2')
        A('s_add_u32 s46, s46, s33')
        A('s_lshl_b32 s46, s46, 17')
        A('s_add_u32 s46, s46, s45')
        A('s_add_u32 s47, s40, s33')
        A('s_lshl_b32 s47, s47, 16')
        A('s_add_u32 s47, s47, s45')
        A('s_cmp_lt_u32 s33, s41')
        A(f's_cselect_b32 s78, {63*1024+128}, 0')
        A('s_cselect_b32 s47, s47, 0')
        A('s_and_b32 s48, s30, 3')
        A('s_lshr_b32 s49, s30, 2')
        A(f's_mul_i32 s49, s49, {64*3584}')
        A('s_cmp_lt_u32 s48, s41')
        A(f's_cselect_b32 s82, {63*3584+128}, 0')
        A('s_cselect_b32 s50, 1, 0')
        A('s_add_u32 s48, s48, s40')
        A('s_lshl_b32 s48, s48, 7')
        A('s_add_u32 s48, s48, s49')
        A('s_mul_i32 s48, s48, s50')
        A(f's_mul_i32 s51, s2, {self.rotmul}')
        A('s_and_b32 s51, s51, 60')
        A('s_lshl_b32 s51, s51, 10')
        A('s_waitcnt lgkmcnt(0)')

        def srd(n, lo, off, size):
            if off is None:
                A(f's_mov_b32 s{n}, s{lo}')
                A(f's_mov_b32 s{n+1}, s{lo+1}')
            else:
                A(f's_add_u32 s{n}, s{lo}, {off}')
                A(f's_addc_u32 s{n+1}, s{lo+1}, 0')
            if size is not None:
                A(f's_mov_b32 s{n+2}, {size}')
            A(f's_mov_b32 s{n+3}, 0x20000')

        groups = []
        nt = ' nt'

        def g_kv(srdn, ldsbase, vbase, nvar, pre_first=None):
            for gi in range(16):
                pre = []
                if gi == 0 and pre_first:
                    pre += pre_first
                pre += [f's_add_u32 s52, s51, {gi*4096}', 's_and_b32 s52, s52, 0xffff',
                        f's_mov_b32 m0, {ldsbase + gi*4096}', 's_nop 0']
                body = [f'buffer_load_dwordx4 v{vbase + (i % nvar)}, s[{srdn}:{srdn+3}], s52 offen offset:{i*1024}{nt} lds'
                        for i in range(4)]
                groups.append([pre, body, None])

        def g_rows(srdn, ldsbase, v, npieces, stride):
            for g0 in range(0, npieces, 4):
                body = []
                for p in range(g0, g0 + 4):
                    body.append(f's_mov_b32 m0, {ldsbase + p*1024}')
                    body.append(f's_mov_b32 s52, {p*8*stride}')
                    body.append(f'buffer_load_dwordx4 v{v + (p & 1)}, s[{srdn}:{srdn+3}], s52 offen{nt} lds')
                groups.append([[], body, None])

        groups.append([[f's_mov_b32 m0, {L_X}', 's_nop 0'],
                       ['buffer_load_dwordx4 v3, s[84:87], 0 offen lds',
                        'buffer_load_dwordx4 v3, s[84:87], 0 offen offset:1024 lds',
                        f's_mov_b32 m0, {L_G}', 's_nop 0',
                        'buffer_load_dwordx4 v3, s[88:91], 0 offen lds'], None])
        g_rows(68, L_WQ, 26, 16, 8192)
        g_rows(80, L_W1, 30, 8, 3584)
        g_kv(60, L_K, 20, 4)
        g_rows(76, L_W2, 28, 8, 1024)
        g_kv(64, L_V, 24, 2)
        g_rows(72, L_WO, 28, 16, 1024)
        assert len(groups) == NGROUPS
        cons_at = 25 + 10
        cnt = lambda g: sum(1 for x in g[1] if x.startswith('buffer_load'))
        ends = []
        tot = 0
        for g in groups:
            tot += cnt(g)
            ends.append(tot)

        setup = {
            0: lambda: (srd(84, 4, None, 2048), srd(88, 20, None, 1024)),
            1: lambda: srd(68, 10, 's44', 127 * 8192 + 128),
            5: lambda: srd(80, 16, 's48', None),
            7: lambda: srd(60, 6, 's43', 65536),
            23: lambda: srd(76, 18, 's47', None),
            25: lambda: srd(64, 8, 's43', 65536),
            41: lambda: srd(72, 12, 's46', 127 * 1024 + 128),
        }
        issued = 0
        landed = 0
        barrier_done = False

        def publish(n_landed):
            nonlocal landed
            k = landed
            while k < NGROUPS and ends[k] <= n_landed:
                k += 1
            if k > landed:
                landed = k
                A(f'v_mov_b32 v8, {k}')
                A('ds_write_b32 v15, v8')
                if self.stamps and k in (1, 5, 7, 23, 25, 33, 41, 45):
                    self.stamp({1: 2, 5: 3, 7: 4, 23: 5, 25: 6, 33: 7, 41: 8, 45: 9}[k])

        self.stamp(1)
        for gi, g in enumerate(groups):
            c = cnt(g)
            if issued + c > self.depth:
                if not barrier_done:
                    A('s_barrier')
                    barrier_done = True
                w = self.depth - c
                A(f's_waitcnt vmcnt({w})')
                publish(issued - w)
            if gi in setup:
                setup[gi]()
            if gi == cons_at:
                A(f'v_mov_b32 v7, {F_CONS}')
                l, d = self.spin_begin('cons')
                A('ds_read_b32 v9, v7')
                A('s_waitcnt lgkmcnt(0)')
                A('v_readfirstlane_b32 s53, v9')
                A('s_cmp_ge_u32 s53, 4')
                A(f's_cbranch_scc0 {l}')
                self.lab(d)
            for x in g[0]:
                A(x)
            for x in g[1]:
                A(x)
            issued += c
        A('v_lshrrev_b32 v4, 1, v0')
        A('v_lshlrev_b32 v4, 10, v4')
        A('v_and_b32 v5, 1, v0')
        A('v_lshl_add_u32 v4, v5, 4, v4')
        A('s_lshl_b32 s54, s29, 15')
        A('s_lshl_b32 s55, s31, 9')
        A('s_add_u32 s54, s54, s55')
        A('s_lshl_b32 s55, s32, 5')
        A('s_add_u32 s54, s54, s55')
        A(f's_add_u32 s54, s54, {W_OUT}')
        A('v_add_u32 v4, s54, v4')
        A('s_lshl_b32 s54, s31, 10')
        A('s_lshl_b32 s55, s29, 7')
        A('s_add_u32 s54, s54, s55')
        A('s_lshl_b32 s55, s32, 3')
        A('s_add_u32 s54, s54, s55')
        A('v_lshlrev_b32 v5, 2, v5')
        A('v_add_u32 v5, s54, v5')
        A(f's_load_dword s35, s[26:27], {W_EPOCH}')
        w = min(self.depth, issued)
        while w > 0:
            w = max(0, w - 4)
            A(f's_waitcnt vmcnt({w})')
            publish(issued - w)
        assert landed == NGROUPS
        A('s_waitcnt lgkmcnt(0)')
        A('s_add_u32 s35, s35, 1')
        A(f'v_mov_b32 v7, {F_OUT}')
        l, d = self.spin_begin('outw')
        A('ds_read_b32 v9, v7')
        A('s_waitcnt lgkmcnt(0)')
        A('v_readfirstlane_b32 s53, v9')
        A('s_cmp_ge_u32 s53, 4')
        A(f's_cbranch_scc0 {l}')
        self.lab(d)
        self.stamp(11)
        A(f's_mov_b32 s53, {SPIN_LIMIT}')
        l = self.newlab('fin')
        d = self.newlab('find')
        self.lab(l)
        A('global_load_dwordx4 v[16:19], v4, s[26:27] sc1')
        A('s_waitcnt vmcnt(0)')
        A('v_cmp_ne_u32 vcc, s35, v17')
        A('v_cmp_ne_u32 s[56:57], s35, v19')
        A('s_or_b64 vcc, vcc, s[56:57]')
        A(f's_cbranch_vccz {d}')
        A('s_sub_u32 s53, s53, 1')
        A(f's_cbranch_scc0 {l}')
        self.lab(d)
        self.stamp(12)
        for v in (16, 18):
            A(f'v_add_f32_dpp v{v}, v{v}, v{v} quad_perm:[2,3,0,1] row_mask:0xf bank_mask:0xf')
        A('s_nop 0')
        for v in (16, 18):
            A(f'v_add_f32_dpp v{v}, v{v}, v{v} row_ror:4 row_mask:0xf bank_mask:0xf')
        A('s_nop 0')
        for v in (16, 18):
            A(f'v_add_f32_dpp v{v}, v{v}, v{v} row_ror:8 row_mask:0xf bank_mask:0xf')
        self.sum_rows_multi([16, 18], [20, 21])
        A('v_cvt_pk_bf16_f32 v16, v16, v18')
        A('v_cmp_gt_u32 vcc, 2, v0')
        A('s_and_saveexec_b64 s[56:57], vcc')
        A('global_store_dword v5, v16, s[22:23]')
        A('s_mov_b64 exec, s[56:57]')
        A('s_cmp_lg_u32 s2, 0')
        A('s_cbranch_scc1 L_fin')
        A('v_mov_b32 v6, 0')
        A('v_mov_b32 v7, s35')
        A('v_cmp_eq_u32 vcc, 0, v0')
        A('s_and_saveexec_b64 s[56:57], vcc')
        A(f'global_store_dword v6, v7, s[26:27] offset:{W_EPOCH} sc1')
        A('s_mov_b64 exec, s[56:57]')
        A('s_branch L_fin')

    def main(self):
        A = self.A
        A('v_lshrrev_b32 v11, 4, v0')
        A('v_and_b32 v12, 15, v0')
        A('v_bfe_u32 v13, v0, 2, 2')
        A('v_and_b32 v14, 3, v0')
        A(f'v_mov_b32 v15, {F_PROG}')
        A('s_mov_b32 s39, 0')
        A('s_getreg_b32 s36, hwreg(HW_REG_XCC_ID, 0, 4)')
        A('s_lshr_b32 s58, s28, 1')
        A('s_and_b32 s59, s28, 1')
        A('s_cmp_lg_u32 s28, 0')
        A('s_cbranch_scc1 L_noinit')
        A('v_mov_b32 v1, 0')
        A('v_lshlrev_b32 v2, 2, v0')
        A(f'v_add_u32 v3, {F_PROG}, v2')
        A('ds_write_b32 v3, v1')
        A('v_cmp_gt_u32 vcc, 16, v0')
        A('s_and_saveexec_b64 s[56:57], vcc')
        A(f'ds_write_b32 v3, v1 offset:256')
        A('v_mov_b32 v1, -1')
        A(f'ds_write_b32 v3, v1 offset:320')
        A('s_mov_b64 exec, s[56:57]')
        self.lab('L_noinit')
        A('s_lshl_b32 s42, s29, 15')
        A('s_lshl_b32 s43, s30, 10')
        A('s_add_u32 s42, s42, s43')
        A(f's_add_u32 s60, s42, {W_O}')
        A('s_lshl_b32 s43, s28, 8')
        A('s_add_u32 s43, s43, s60')
        A('v_lshlrev_b32 v1, 4, v0')
        A('v_add_u32 v1, s43, v1')
        A('s_lshl_b32 s42, s29, 14')
        A('s_and_b32 s43, s30, 3')
        A('s_lshl_b32 s43, s43, 12')
        A('s_add_u32 s42, s42, s43')
        A('s_lshr_b32 s43, s30, 2')
        A('s_lshl_b32 s43, s43, 9')
        A('s_add_u32 s42, s42, s43')
        A(f's_add_u32 s61, s42, {W_H}')
        A('s_lshl_b32 s43, s28, 6')
        A('s_add_u32 s43, s43, s61')
        A('v_bfe_u32 v2, v0, 2, 1')
        A('v_lshlrev_b32 v2, 8, v2')
        A('v_lshl_add_u32 v2, v14, 4, v2')
        A('v_add_u32 v2, s43, v2')
        A('v_cmp_gt_u32 vcc, 16, v0')
        A('s_nop 1')
        A('v_cndmask_b32 v1, v2, v1, vcc')
        A('s_lshl_b32 s42, s29, 10')
        A('s_lshl_b32 s43, s28, 8')
        A('s_add_u32 s42, s42, s43')
        A('s_lshl_b32 s43, s30, 3')
        A('s_add_u32 s42, s42, s43')
        A(f's_add_u32 s62, s42, {W_ML}')
        A('v_mov_b32 v3, s62')
        A('v_mov_b32 v4, -1')
        A('v_mov_b32 v5, -1')
        A('v_mov_b32 v6, -1')
        A('v_mov_b32 v7, -1')
        A(f'v_add_u32 v2, {W_B}, v1')
        A(f'v_add_u32 v8, {W_B}, v3')
        A('s_waitcnt lgkmcnt(0)')
        A(f's_load_dword s35, s[26:27], {W_EPOCH}')
        A('v_cmp_gt_u32 vcc, 24, v0')
        A('s_and_saveexec_b64 s[56:57], vcc')
        A('global_store_dwordx4 v1, v[4:7], s[26:27]')
        A('global_store_dwordx4 v2, v[4:7], s[26:27] sc1')
        A('s_mov_b64 exec, 1')
        A('global_store_dwordx2 v3, v[4:5], s[26:27]')
        A('global_store_dwordx2 v8, v[4:5], s[26:27] sc1')
        A('s_mov_b64 exec, s[56:57]')
        A('v_lshl_add_u32 v1, v11, 3, v13')
        A('v_lshlrev_b32 v1, 7, v1')
        A('v_lshl_add_u32 v1, v14, 3, v1')
        A('v_lshrrev_b32 v2, 1, v13')
        A('v_and_b32 v3, 1, v11')
        A('v_lshl_or_b32 v2, v3, 1, v2')
        A('v_xor_b32 v3, s28, v2')
        A('v_lshl_add_u32 v3, v3, 5, v1')
        A(f'v_add_u32 v16, {L_WQ}, v3')
        A(f'v_add_u32 v17, {L_W1}, v3')
        A('s_lshl_b32 s42, s59, 1')
        A('v_xor_b32 v3, s42, v2')
        A('v_lshl_add_u32 v3, v3, 5, v1')
        A(f'v_add_u32 v18, {L_WO}, v3')
        A('v_xor_b32 v19, 32, v18')
        A('v_and_b32 v1, 1, v12')
        A('v_lshlrev_b32 v1, 10, v1')
        A('v_lshl_add_u32 v1, v11, 4, v1')
        A(f'v_add_u32 v1, {L_X}, v1')
        A('s_lshl_b32 s42, s33, 8')
        A('v_add_u32 v20, s42, v1')
        A('s_lshr_b32 s42, s30, 2')
        A('s_lshl_b32 s42, s42, 7')
        A('v_add_u32 v21, s42, v1')
        A('v_xor_b32 v1, v11, v12')
        A('s_lshl_b32 s42, s28, 14')
        A('v_lshlrev_b32 v2, 8, v12')
        A('v_add_u32 v2, s42, v2')
        for k in range(4):
            A(f'v_xor_b32 v3, {4*k}, v1')
            A(f'v_lshl_add_u32 v{22+k}, v3, 4, v2')
        A('v_lshl_add_u32 v1, v11, 2, v13')
        A('v_and_b32 v2, 7, v1')
        A('v_lshlrev_b32 v1, 8, v1')
        A('v_lshl_add_u32 v1, v14, 3, v1')
        A(f'v_add_u32 v1, {L_V}, v1')
        A('s_lshl_b32 s42, s28, 1')
        A('v_xor_b32 v2, s42, v2')
        A('v_lshl_add_u32 v26, v2, 5, v1')
        A('v_xor_b32 v27, 32, v26')
        A('s_barrier')
        self.stamp(1)

        self.wait_prog(P_X)
        A('v_lshlrev_b32 v1, 4, v0')
        A('s_lshl_b32 s42, s58, 10')
        A('v_add_u32 v2, s42, v1')
        A(f'v_add_u32 v2, {L_X}, v2')
        A(f'v_add_u32 v1, {L_G}, v1')
        A('ds_read_b128 v[32:35], v2')
        A('ds_read_b128 v[36:39], v1')
        for k in range(4):
            A(f'ds_read_b128 v[{40+4*k}:{43+4*k}], v20 offset:{64*k}')
        for k in range(2):
            A(f'ds_read_b128 v[{56+4*k}:{59+4*k}], v21 offset:{64*k}')
        A('v_mov_b32 v28, 0')
        A('s_waitcnt lgkmcnt(6)')
        for k in range(4):
            A(f'v_dot2c_f32_bf16 v28, v{32+k}, v{36+k}')
        A('s_nop 2')
        A('v_add_f32_dpp v28, v28, v28 quad_perm:[1,0,3,2] row_mask:0xf bank_mask:0xf')
        A('s_nop 1')
        A('v_add_f32_dpp v28, v28, v28 quad_perm:[2,3,0,1] row_mask:0xf bank_mask:0xf')
        A('s_nop 1')
        A('v_add_f32_dpp v28, v28, v28 row_ror:4 row_mask:0xf bank_mask:0xf')
        A('s_nop 1')
        A('v_add_f32_dpp v28, v28, v28 row_ror:8 row_mask:0xf bank_mask:0xf')
        self.sum_rows(28, 1)
        A(f's_mov_b32 s42, {LOG2E}')
        A('v_mul_f32 v28, s42, v28')
        A('v_sub_f32 v28, 0, v28')
        A('v_exp_f32 v28, v28')
        A('s_nop 0')
        A('v_add_f32 v28, 1.0, v28')
        A('v_rcp_f32 v28, v28')
        A('s_nop 0')
        A('v_sub_f32 v29, 1.0, v28')
        self.stamp(2)

        self.wait_prog(P_WQ)
        for k in range(4):
            for eta in range(2):
                A(f'ds_read_b64_tr_b16 v[{64+4*k+2*eta}:{65+4*k+2*eta}], v16 offset:{k*4096+eta*512}')
        for k in range(4):
            A(f's_waitcnt lgkmcnt({6-2*k})')
            c = '0' if k == 0 else 'v[80:83]'
            A(f'v_mfma_f32_16x16x32_bf16 v[80:83], v[{64+4*k}:{67+4*k}], v[{40+4*k}:{43+4*k}], {c}')
        A('s_lshl_b32 s42, s29, 14')
        A('s_lshl_b32 s43, s33, 11')
        A('s_add_u32 s42, s42, s43')
        A('s_lshl_b32 s43, s34, 8')
        A('s_add_u32 s42, s42, s43')
        A('s_lshl_b32 s43, s28, 6')
        A('s_add_u32 s42, s42, s43')
        A(f's_add_u32 s42, s42, {W_Q}')
        A('v_lshlrev_b32 v1, 13, v12')
        A('v_lshl_add_u32 v1, v11, 4, v1')
        A('v_add_u32 v1, s42, v1')
        A(f'v_add_u32 v2, {W_B}, v1')
        A('s_waitcnt lgkmcnt(0)')
        A('s_add_u32 s35, s35, 1')
        A('s_lshl_b32 s43, s36, 24')
        A('s_xor_b32 s43, s43, s35')
        A('s_nop 3')
        A('v_cvt_pk_bf16_f32 v4, v80, v81')
        A('v_mov_b32 v5, s35')
        A('v_cvt_pk_bf16_f32 v6, v82, v83')
        A('v_mov_b32 v7, s43')
        A('s_waitcnt vmcnt(0)')
        A('v_cmp_gt_u32 vcc, 2, v12')
        A('s_and_saveexec_b64 s[56:57], vcc')
        A('global_store_dwordx4 v1, v[4:7], s[26:27]')
        A('global_store_dwordx4 v2, v[4:7], s[26:27] sc1')
        A('s_mov_b64 exec, s[56:57]')
        self.stamp(3)

        self.wait_prog(P_W1)
        for k in range(2):
            for eta in range(2):
                A(f'ds_read_b64_tr_b16 v[{64+4*k+2*eta}:{65+4*k+2*eta}], v17 offset:{k*4096+eta*512}')
        for k in range(2):
            A(f's_waitcnt lgkmcnt({2-2*k})')
            c = '0' if k == 0 else 'v[80:83]'
            A(f'v_mfma_f32_16x16x32_bf16 v[80:83], v[{64+4*k}:{67+4*k}], v[{56+4*k}:{59+4*k}], {c}')
        A(f'v_mov_b32 v1, {F_CONS}')
        A('v_mov_b32 v2, 1')
        A('s_mov_b64 s[56:57], exec')
        A('s_mov_b64 exec, 1')
        A('ds_add_u32 v1, v2')
        A('s_mov_b64 exec, s[56:57]')
        A('s_lshl_b32 s42, s28, 6')
        A('s_add_u32 s42, s42, s61')
        A('v_lshlrev_b32 v1, 8, v12')
        A('v_lshl_add_u32 v1, v11, 4, v1')
        A('v_add_u32 v1, s42, v1')
        A(f'v_add_u32 v2, {W_B}, v1')
        A('s_and_b32 s42, s30, 3')
        A('s_cmp_lt_u32 s42, s41')
        A('s_cbranch_scc0 L_nohpub')
        A('v_cmp_gt_u32 vcc, 2, v12')
        A('s_and_saveexec_b64 s[56:57], vcc')
        A('global_store_dwordx4 v1, v[80:83], s[26:27]')
        A('global_store_dwordx4 v2, v[80:83], s[26:27] sc1')
        A('s_mov_b64 exec, s[56:57]')
        self.lab('L_nohpub')
        self.stamp(4)

        A('s_lshl_b32 s42, s29, 14')
        A('s_lshl_b32 s43, s31, 13')
        A('s_add_u32 s42, s42, s43')
        A('s_lshl_b32 s43, s28, 9')
        A('s_add_u32 s42, s42, s43')
        A(f's_add_u32 s42, s42, {W_Q}')
        A('v_lshrrev_b32 v1, 5, v0')
        A('v_lshlrev_b32 v1, 11, v1')
        A('v_and_b32 v2, 31, v0')
        A('v_lshl_add_u32 v1, v2, 4, v1')
        A('v_add_u32 v30, s42, v1')
        A('s_mov_b32 s44, 0')
        lq = self.newlab('qpoll')
        dq = self.newlab('qdone')
        self.lab(lq)
        A(f's_cmp_lt_u32 s44, {self.na}')
        A('s_cselect_b32 s45, 0, s44')
        A('s_and_b32 s45, s45, 1')
        A(f's_mul_i32 s45, s45, {W_B}')
        A('v_add_u32 v1, s45, v30')
        A('v_add_u32 v2, 4096, v1')
        A('global_load_dwordx4 v[32:35], v1, s[26:27] sc1')
        A('global_load_dwordx4 v[36:39], v2, s[26:27] sc1')
        A('s_waitcnt vmcnt(0)')
        A('v_xor_b32 v33, s35, v33')
        A('v_xor_b32 v35, s35, v35')
        A('v_xor_b32 v37, s35, v37')
        A('v_xor_b32 v39, s35, v39')
        A('v_or_b32 v3, v35, v39')
        A('v_and_b32 v3, 0xf0ffffff, v3')
        A('v_or3_b32 v3, v3, v33, v37')
        A('v_cmp_ne_u32 vcc, 0, v3')
        A(f's_cbranch_vccz {dq}')
        A('s_add_u32 s44, s44, 1')
        A(f's_cmp_lt_u32 s44, {SPIN_LIMIT}')
        A(f's_cbranch_scc1 {lq}')
        self.lab(dq)
        A('s_lshl_b32 s43, s36, 24')
        A('v_cmp_ne_u32 vcc, s43, v35')
        A('v_cmp_ne_u32 s[56:57], s43, v39')
        A('s_or_b64 vcc, vcc, s[56:57]')
        A('s_cmp_eq_u64 vcc, 0')
        A('s_cselect_b32 s45, 3, 1')
        for src in (32, 36):
            for d in range(2):
                A(f'v_lshlrev_b32 v{40 + (src-32) + 2*d}, 16, v{src + 2*d}')
                A(f'v_and_b32 v{41 + (src-32) + 2*d}, 0xffff0000, v{src + 2*d}')
        for k in range(4):
            A(f'v_add_f32 v{40+k}, v{40+k}, v{44+k}')
        for k in range(4):
            A(f'v_mov_b32 v{44+k}, v{40+k}')
        A('s_nop 1')
        for k in range(4):
            A(f'v_permlane32_swap_b32 v{40+k}, v{44+k}')
        A('s_nop 1')
        for k in range(4):
            A(f'v_add_f32 v{40+k}, v{40+k}, v{44+k}')
        A('v_cvt_pk_bf16_f32 v4, v40, v41')
        A('v_cvt_pk_bf16_f32 v5, v42, v43')
        A('v_and_b32 v2, 31, v0')
        A('v_lshlrev_b32 v2, 3, v2')
        A('s_lshl_b32 s42, s28, 8')
        A(f's_add_u32 s42, s42, {L_QST}')
        A('v_add_u32 v2, s42, v2')
        A('ds_write_b64 v2, v[4:5]')
        A('s_lshl_b32 s42, s28, 2')
        A(f's_add_u32 s42, s42, {F_QRDY}')
        A('v_mov_b32 v1, s42')
        A('v_mov_b32 v2, s45')
        A('s_waitcnt lgkmcnt(0)')
        A('s_mov_b64 s[56:57], exec')
        A('s_mov_b64 exec, 1')
        A('ds_write_b32 v1, v2')
        A('s_mov_b64 exec, s[56:57]')
        self.stamp(5)
        A(f'v_mov_b32 v1, {F_QRDY}')
        A('s_mov_b32 s45, 1')
        l, d = self.spin_begin('qrdy')
        A('ds_read_b128 v[4:7], v1')
        A('s_waitcnt lgkmcnt(0)')
        A('v_and_b32 v4, v4, v5')
        A('v_and_b32 v6, v6, v7')
        A('v_and_b32 v4, v4, v6')
        A('s_nop 0')
        A('v_readfirstlane_b32 s45, v4')
        A('s_bitcmp1_b32 s45, 0')
        A(f's_cbranch_scc0 {l}')
        self.lab(d)
        A('s_bitcmp1_b32 s45, 1')
        A(f's_cselect_b32 s37, 0, {W_B}')
        A('s_lshl_b32 s42, s29, 14')
        A('s_lshl_b32 s43, s33, 12')
        A('s_add_u32 s42, s42, s43')
        A(f's_add_u32 s42, s42, {W_H}')
        A('s_add_u32 s42, s42, s37')
        A('v_lshlrev_b32 v31, 4, v0')
        A('v_add_u32 v31, s42, v31')
        for k in range(4):
            A(f'global_load_dwordx4 v[{208+4*k}:{211+4*k}], v31, s[26:27] offset:{1024*k} sc1')
        A('v_lshlrev_b32 v1, 8, v14')
        A('v_lshl_add_u32 v1, v11, 4, v1')
        A(f'v_add_u32 v1, {L_QST}, v1')
        for k in range(4):
            A(f'ds_read_b128 v[{32+4*k}:{35+4*k}], v1 offset:{64*k}')
        self.stamp(6)

        self.wait_prog(P_K)
        A('s_waitcnt lgkmcnt(0)')
        for t in range(4):
            for k in range(4):
                A(f'ds_read_b128 v[{64+16*t+4*k}:{67+16*t+4*k}], v{22+k} offset:{t*4096}')
        for t in range(4):
            A(f's_waitcnt lgkmcnt({12-4*t})')
            for k in range(4):
                c = '0' if k == 0 else f'v[{48+4*t}:{51+4*t}]'
                A(f'v_mfma_f32_16x16x32_bf16 v[{48+4*t}:{51+4*t}], v[{64+16*t+4*k}:{67+16*t+4*k}], v[{32+4*k}:{35+4*k}], {c}')
        A('s_nop 7')
        A('v_max3_f32 v1, v48, v49, v50')
        A('v_max3_f32 v2, v51, v52, v53')
        A('v_max3_f32 v3, v54, v55, v56')
        A('v_max3_f32 v4, v57, v58, v59')
        A('v_max3_f32 v1, v1, v60, v61')
        A('v_max3_f32 v2, v2, v62, v63')
        A('v_max3_f32 v1, v1, v3, v4')
        A('v_max_f32 v1, v1, v2')
        self.sum_rows(1, 2, 'v_max_f32')
        A('s_lshl_b32 s42, s28, 2')
        A(f's_add_u32 s42, s42, {F_MX}')
        A('v_lshlrev_b32 v2, 4, v14')
        A('v_add_u32 v3, s42, v2')
        A(f'v_add_u32 v2, {F_MX}, v2')
        A('v_cmp_gt_u32 vcc, 4, v0')
        A('s_and_saveexec_b64 s[56:57], vcc')
        A('ds_write_b32 v3, v1')
        A('s_mov_b64 exec, s[56:57]')
        l, d = self.spin_begin('mx')
        A('ds_read_b128 v[4:7], v2')
        A('s_waitcnt lgkmcnt(0)')
        A('v_max_u32 v8, v4, v5')
        A('v_max3_u32 v8, v8, v6, v7')
        A('v_cmp_eq_u32 vcc, -1, v8')
        A(f's_cbranch_vccnz {l}')
        self.lab(d)
        A('v_max3_f32 v1, v4, v5, v6')
        A('v_max_f32 v1, v1, v7')
        A(f's_mov_b32 s42, {SCALE_C}')
        A('v_mul_f32 v30, s42, v1')
        for r in range(16):
            A(f'v_fma_f32 v{48+r}, v{48+r}, s42, -v30')
        for r in range(16):
            A(f'v_exp_f32 v{48+r}, v{48+r}')
        A('s_nop 0')
        for u in range(2):
            for q in range(4):
                A(f'v_cvt_pk_bf16_f32 v{64+4*u+q}, v{48+8*u+2*q}, v{49+8*u+2*q}')
        A('v_lshlrev_b32 v1, 4, v0')
        A('s_lshl_b32 s42, s28, 14')
        A('v_add_u32 v2, s42, v1')
        A('ds_write_b128 v2, v[64:67]')
        A('ds_write_b128 v2, v[68:71] offset:1024')
        A('s_lshl_b32 s42, s28, 2')
        A(f's_add_u32 s42, s42, {F_PRDY}')
        A('v_mov_b32 v3, s42')
        A('v_mov_b32 v4, 1')
        A('s_waitcnt lgkmcnt(0)')
        A('s_mov_b64 s[56:57], exec')
        A('s_mov_b64 exec, 1')
        A('ds_write_b32 v3, v4')
        A('s_mov_b64 exec, s[56:57]')
        self.stamp(7)
        A(f'v_mov_b32 v3, {F_PRDY}')
        l, d = self.spin_begin('prdy')
        A('ds_read_b128 v[4:7], v3')
        A('s_waitcnt lgkmcnt(0)')
        A('v_and_b32 v4, v4, v5')
        A('v_and_b32 v6, v6, v7')
        A('v_and_b32 v4, v4, v6')
        A('s_nop 0')
        A('v_readfirstlane_b32 s45, v4')
        A('s_cmp_eq_u32 s45, 1')
        A(f's_cbranch_scc0 {l}')
        self.lab(d)
        for U in range(8):
            A(f'ds_read_b128 v[{64+4*U}:{67+4*U}], v1 offset:{(U>>1)*16384 + (U&1)*1024}')
        for r in range(4):
            A(f'v_mov_b32 v{32+r}, 0x3f803f80')
            A(f'v_mov_b32 v{36+r}, 0')
            A(f'v_mov_b32 v{40+r}, 0')
            A(f'v_mov_b32 v{44+r}, 0')
        A('s_waitcnt lgkmcnt(0)')
        for U in range(8):
            A(f'v_mfma_f32_16x16x32_bf16 v[36:39], v[32:35], v[{64+4*U}:{67+4*U}], v[36:39]')
        self.stamp(8)

        for U in range(8):
            self.wait_prog(P_V0 + 2 * (U + 1))
            base = 96 + 8 * (U & 1)
            for ds in range(2):
                for eta in range(2):
                    A(f'ds_read_b64_tr_b16 v[{base+4*ds+2*eta}:{base+4*ds+2*eta+1}], v{26+ds} offset:{U*8192+eta*4096}')
            A('s_waitcnt lgkmcnt(2)')
            A(f'v_mfma_f32_16x16x32_bf16 v[40:43], v[{base}:{base+3}], v[{64+4*U}:{67+4*U}], v[40:43]')
            A('s_waitcnt lgkmcnt(0)')
            A(f'v_mfma_f32_16x16x32_bf16 v[44:47], v[{base+4}:{base+7}], v[{64+4*U}:{67+4*U}], v[44:47]')
        self.stamp(9)
        A('v_lshlrev_b32 v1, 8, v14')
        A('v_bfe_u32 v2, v0, 2, 1')
        A('v_lshl_add_u32 v1, v2, 5, v1')
        A('v_lshl_add_u32 v1, v11, 3, v1')
        A('s_lshl_b32 s42, s28, 6')
        A('s_add_u32 s42, s42, s60')
        A('s_add_u32 s42, s42, s37')
        A('v_add_u32 v1, s42, v1')
        A('v_cmp_eq_u32 vcc, 1, v2')
        A('s_add_u32 s43, s62, s37')
        A('v_mov_b32 v3, s43')
        A('s_nop 3')
        for r in range(4):
            A(f'v_cndmask_b32 v{4+r}, v{40+r}, v{44+r}, vcc')
        A('v_cvt_pk_bf16_f32 v4, v4, v5')
        A('v_cvt_pk_bf16_f32 v5, v6, v7')
        A('v_mov_b32 v6, v30')
        A('v_mov_b32 v7, v36')
        A('v_cmp_gt_u32 vcc, 8, v12')
        A('v_cmp_eq_u32 s[44:45], s28, v0')
        A('s_mov_b64 s[56:57], exec')
        A('s_cmp_eq_u32 s37, 0')
        A('s_cbranch_scc0 L_opub_far')
        A('s_mov_b64 exec, vcc')
        A('global_store_dwordx2 v1, v[4:5], s[26:27]')
        A('s_mov_b64 exec, s[44:45]')
        A('global_store_dwordx2 v3, v[6:7], s[26:27]')
        A('s_branch L_opub_done')
        self.lab('L_opub_far')
        A('s_mov_b64 exec, vcc')
        A('global_store_dwordx2 v1, v[4:5], s[26:27] sc1')
        A('s_mov_b64 exec, s[44:45]')
        A('global_store_dwordx2 v3, v[6:7], s[26:27] sc1')
        self.lab('L_opub_done')
        A('s_mov_b64 exec, s[56:57]')
        self.stamp(10)

        for r in range(4):
            A(f'v_mov_b32 v{48+r}, 0')
            A(f'v_mov_b32 v{52+r}, 0')
        A('s_cmp_lt_u32 s33, s41')
        A('s_cbranch_scc0 L_noffn')
        A(f's_mov_b32 s44, {SPIN_LIMIT}')
        l = self.newlab('hpoll')
        d = self.newlab('hdone')
        self.lab(l)
        A('s_waitcnt vmcnt(0)')
        A('v_max3_u32 v1, v208, v209, v210')
        for k in range(211, 223, 2):
            A(f'v_max3_u32 v1, v1, v{k}, v{k+1}')
        A('v_max_u32 v1, v1, v223')
        A('v_cmp_eq_u32 vcc, -1, v1')
        A(f's_cbranch_vccz {d}')
        for k in range(4):
            A(f'global_load_dwordx4 v[{208+4*k}:{211+4*k}], v31, s[26:27] offset:{1024*k} sc1')
        A('s_sub_u32 s44, s44, 1')
        A(f's_cbranch_scc0 {l}')
        self.lab(d)
        for q in range(4):
            A(f'v_add_f32 v{208+q}, v{208+q}, v{212+q}')
            A(f'v_add_f32 v{216+q}, v{216+q}, v{220+q}')
        for q in range(4):
            A(f'v_add_f32 v{208+q}, v{208+q}, v{216+q}')
            A(f'v_mov_b32 v{212+q}, v{208+q}')
        A('s_nop 1')
        for q in range(4):
            A(f'v_permlane32_swap_b32 v{208+q}, v{212+q}')
        A('s_nop 1')
        A(f's_mov_b32 s42, {LOG2E}')
        for q in range(4):
            A(f'v_add_f32 v{208+q}, v{208+q}, v{212+q}')
        for q in range(4):
            A(f'v_mul_f32 v{212+q}, s42, v{208+q}')
            A(f'v_sub_f32 v{212+q}, 0, v{212+q}')
        for q in range(4):
            A(f'v_exp_f32 v{212+q}, v{212+q}')
        A('s_nop 0')
        for q in range(4):
            A(f'v_add_f32 v{212+q}, 1.0, v{212+q}')
        for q in range(4):
            A(f'v_rcp_f32 v{212+q}, v{212+q}')
        A('s_nop 0')
        for q in range(4):
            A(f'v_mul_f32 v{208+q}, v{208+q}, v{212+q}')
        A('v_cvt_pk_bf16_f32 v4, v208, v209')
        A('v_cvt_pk_bf16_f32 v5, v210, v211')
        A('v_and_b32 v1, 31, v0')
        A('v_lshlrev_b32 v1, 3, v1')
        A('s_lshl_b32 s42, s28, 8')
        A(f's_add_u32 s42, s42, {L_HST}')
        A('v_add_u32 v1, s42, v1')
        A('ds_write_b64 v1, v[4:5]')
        A('v_and_b32 v1, 1, v12')
        A('v_lshlrev_b32 v1, 7, v1')
        A('v_lshl_add_u32 v1, v11, 4, v1')
        A('v_add_u32 v1, s42, v1')
        A('s_waitcnt lgkmcnt(0)')
        A('ds_read_b128 v[56:59], v1')
        A('ds_read_b128 v[60:63], v1 offset:64')
        self.wait_prog(P_W2)
        for t in range(2):
            for k in range(2):
                for eta in range(2):
                    rb = 96 + 8*t + 4*k + 2*eta
                    A(f'ds_read_b64_tr_b16 v[{rb}:{rb+1}], v{18+t} offset:{L_W2-L_WO + k*4096 + eta*512}')
        A('s_waitcnt lgkmcnt(0)')
        for k in range(2):
            for t in range(2):
                A(f'v_mfma_f32_16x16x32_bf16 v[{48+4*t}:{51+4*t}], v[{56+4*k}:{59+4*k}], v[{96+8*t+4*k}:{99+8*t+4*k}], v[{48+4*t}:{51+4*t}]')
        self.lab('L_noffn')
        self.stamp(11)

        A('s_lshl_b32 s42, s29, 15')
        A('s_lshl_b32 s43, s58, 14')
        A('s_add_u32 s42, s42, s43')
        A('s_lshl_b32 s43, s33, 8')
        A('s_add_u32 s42, s42, s43')
        A(f's_add_u32 s42, s42, {W_O}')
        A('s_add_u32 s42, s42, s37')
        A('v_lshlrev_b32 v1, 10, v12')
        A('v_lshl_add_u32 v1, v11, 4, v1')
        A('v_add_u32 v1, s42, v1')
        A('s_lshl_b32 s42, s29, 10')
        A('s_lshl_b32 s43, s33, 8')
        A('s_add_u32 s42, s42, s43')
        A('s_lshl_b32 s43, s58, 7')
        A('s_add_u32 s42, s42, s43')
        A(f's_add_u32 s42, s42, {W_ML}')
        A('s_add_u32 s42, s42, s37')
        A('v_lshlrev_b32 v2, 5, v11')
        A('v_add_u32 v2, s42, v2')
        A(f's_mov_b32 s44, {SPIN_LIMIT}')
        l = self.newlab('opoll')
        d = self.newlab('odone')
        self.lab(l)
        for k in range(4):
            A(f'global_load_dwordx4 v[{64+4*k}:{67+4*k}], v1, s[26:27] offset:{64*k} sc1')
        A('global_load_dwordx4 v[80:83], v2, s[26:27] sc1')
        A('global_load_dwordx4 v[84:87], v2, s[26:27] offset:16 sc1')
        A('s_waitcnt vmcnt(0)')
        A('v_max3_u32 v3, v64, v65, v66')
        for k in range(67, 87, 2):
            A(f'v_max3_u32 v3, v3, v{k}, v{k+1}')
        A('v_max_u32 v3, v3, v87')
        A('v_cmp_eq_u32 vcc, -1, v3')
        A(f's_cbranch_vccz {d}')
        A('s_sub_u32 s44, s44, 1')
        A(f's_cbranch_scc0 {l}')
        self.lab(d)
        self.stamp(12)
        A('v_max3_f32 v3, v80, v82, v84')
        A('v_max_f32 v3, v3, v86')
        self.sum_rows(3, 4, 'v_max_f32')
        for r in range(4):
            A(f'v_sub_f32 v{80+2*r}, v{80+2*r}, v3')
        for r in range(4):
            A(f'v_exp_f32 v{80+2*r}, v{80+2*r}')
        A('s_nop 0')
        A('v_mul_f32 v3, v80, v81')
        for r in range(1, 4):
            A(f'v_fmac_f32 v3, v{80+2*r}, v{81+2*r}')
        self.sum_rows(3, 4)
        A('v_rcp_f32 v3, v3')
        A('s_nop 0')
        A('v_mul_f32 v3, v3, v28')
        for r in range(4):
            A(f'v_mul_f32 v{80+2*r}, v{80+2*r}, v3')
        for k in range(4):
            self.wait_prog(P_WO0 + k + 1)
            for t in range(2):
                for eta in range(2):
                    rb = 96 + 8*(k & 1) + 4*t + 2*eta
                    A(f'ds_read_b64_tr_b16 v[{rb}:{rb+1}], v{18+t} offset:{k*4096 + eta*512}')
            rb = 96 + 8*(k & 1)
            A('s_waitcnt lgkmcnt(2)')
            c0 = '0' if k == 0 else 'v[88:91]'
            c1 = '0' if k == 0 else 'v[92:95]'
            A(f'v_mfma_f32_16x16x32_bf16 v[88:91], v[{64+4*k}:{67+4*k}], v[{rb}:{rb+3}], {c0}')
            A('s_waitcnt lgkmcnt(0)')
            A(f'v_mfma_f32_16x16x32_bf16 v[92:95], v[{64+4*k}:{67+4*k}], v[{rb+4}:{rb+7}], {c1}')
        A('s_nop 7')
        for t in range(2):
            A(f'v_mul_f32 v{4+t}, v80, v{88+4*t}')
        for r in range(1, 4):
            for t in range(2):
                A(f'v_fmac_f32 v{4+t}, v{80+2*r}, v{88+4*t+r}')
        self.sum_rows_multi([4, 5], [6, 7])
        A('s_cmp_eq_u32 s58, 0')
        A('s_cselect_b64 vcc, -1, 0')
        A('v_cndmask_b32 v6, v49, v48, vcc')
        A('v_cndmask_b32 v7, v53, v52, vcc')
        A('v_fmac_f32 v4, v29, v6')
        A('v_fmac_f32 v5, v29, v7')
        A('v_cmp_eq_u32 vcc, 1, v11')
        A('s_nop 1')
        A('v_cndmask_b32 v4, v4, v5, vcc')
        A('s_nop 1')
        A('v_mov_b32_dpp v6, v4 quad_perm:[1,0,3,2] row_mask:0xf bank_mask:0xf')
        A('v_mov_b32 v5, s35')
        A('v_mov_b32 v7, s35')
        A('s_lshl_b32 s42, s34, 15')
        A('s_lshl_b32 s43, s29, 12')
        A('s_add_u32 s42, s42, s43')
        A('s_lshl_b32 s43, s33, 10')
        A('s_add_u32 s42, s42, s43')
        A('s_lshl_b32 s43, s58, 9')
        A('s_add_u32 s42, s42, s43')
        A('s_lshl_b32 s43, s59, 8')
        A('s_add_u32 s42, s42, s43')
        A(f's_add_u32 s42, s42, {W_OUT}')
        A('v_lshlrev_b32 v1, 3, v0')
        A('v_add_u32 v1, s42, v1')
        A('v_and_b32 v2, 33, v0')
        A('v_cmp_eq_u32 vcc, 0, v2')
        A('s_and_saveexec_b64 s[56:57], vcc')
        A('global_store_dwordx4 v1, v[4:7], s[26:27] sc1')
        A('s_mov_b64 exec, 1')
        A(f'v_mov_b32 v1, {F_OUT}')
        A('v_mov_b32 v2, 1')
        A('ds_add_u32 v1, v2')
        A('s_mov_b64 exec, s[56:57]')
        self.stamp(13)

    def epilogue(self):
        A = self.A
        self.lab('L_fin')
        if self.stamps:
            A('v_writelane_b32 v10, s96, 0')
            A('s_mul_i32 s42, s2, 5')
            A('s_add_u32 s42, s42, s28')
            A('s_lshl_b32 s42, s42, 8')
            A(f's_add_u32 s42, s42, {W_STAMP}')
            A('v_lshlrev_b32 v1, 2, v0')
            A('v_add_u32 v1, s42, v1')
            A('global_store_dword v1, v10, s[26:27]')
        self.lab('L_end')
        A('s_endpgm')

    def build(self):
        self.header()
        self.prologue()
        self.main()
        self.A('s_branch L_fin')
        self.loader()
        self.epilogue()
        self.footer()
        return '\n'.join(self.L) + '\n'


if __name__ == '__main__':
    import argparse
    ap = argparse.ArgumentParser()
    ap.add_argument('-o', default='cdna_kernels/' + KN + '.s')
    ap.add_argument('--stamps', action='store_true')
    ap.add_argument('--depth', type=int, default=32)
    ap.add_argument('--rotmul', type=int, default=20)
    a = ap.parse_args()
    g = Gen(stamps=a.stamps, depth=a.depth, rotmul=a.rotmul)
    open(a.o, 'w').write(g.build())
    print('wrote', a.o)
```

```python
import sys

KN = 'gated_mix__sliding_block_cached__dense_activation_silu__decode'

L_K = 0
L_V = 65536
L_WQ = L_V + 49152
L_W1 = L_V + 40960
L_WO = 131072
L_W2 = 147456
L_X = 155648
L_G = 157696
L_QST = 158720
L_HST = 159744
L_F = 160768
F_PROG = L_F
F_QRDY = L_F + 256
F_PRDY = L_F + 272
F_CONS = L_F + 288
F_OUT = L_F + 292
F_MX = L_F + 320
LDS_BYTES = 163840

W_EPOCH = 0
W_Q = 0x10000
W_O = 0x50000
W_ML = 0xD0000
W_H = 0xE0000
W_OUT = 0x120000
W_B = 0x200000
W_STAMP = 0x10000000

P_X = 1
P_WQ = 5
P_W1 = 7
P_K = 23
P_W2 = 25
P_V0 = 25
P_WO0 = 41
NGROUPS = 45

SPIN_LIMIT = 1 << 18
SCALE_C = 0x3e0293ee
LOG2E = 0x3fb8aa3b


class Gen:
    def __init__(self, stamps=False, depth=32, rotmul=20, na_rounds=2, dbg=False):
        self.dbg = dbg
        self.L = []
        self.stamps = stamps
        self.depth = depth
        self.rotmul = rotmul
        self.na = na_rounds
        self.uid = 0
        self.nstamp = 0
        self.stampnames = {}

    def A(self, s):
        self.L.append('  ' + s)

    def lab(self, s):
        self.L.append(s + ':')

    def newlab(self, p):
        self.uid += 1
        return f'L_{p}_{self.uid}'

    def stamp(self, idx, name=None):
        if not self.stamps:
            return
        self.A('s_memrealtime s[98:99]')
        self.A('s_waitcnt lgkmcnt(0)')
        self.A(f'v_writelane_b32 v10, s98, {idx}')

    def wait_prog(self, thr):
        l = self.newlab('wp')
        d = self.newlab('wpd')
        self.A(f's_cmp_ge_u32 s39, {thr}')
        self.A(f's_cbranch_scc1 {d}')
        self.A(f's_mov_b32 s63, {SPIN_LIMIT}')
        self.lab(l)
        self.A('ds_read_b32 v9, v15')
        self.A('s_sub_u32 s63, s63, 1')
        self.A(f's_cbranch_scc1 {d}')
        self.A('s_waitcnt lgkmcnt(0)')
        self.A('v_readfirstlane_b32 s39, v9')
        self.A(f's_cmp_ge_u32 s39, {thr}')
        self.A(f's_cbranch_scc0 {l}')
        self.lab(d)

    def spin_begin(self, name):
        l = self.newlab(name)
        d = self.newlab(name + 'd')
        self.A(f's_mov_b32 s63, {SPIN_LIMIT}')
        self.lab(l)
        self.A('s_sub_u32 s63, s63, 1')
        self.A(f's_cbranch_scc1 {d}')
        return l, d

    def sum_rows(self, v, t, op='v_add_f32'):
        A = self.A
        A(f'v_mov_b32 v{t}, v{v}')
        A('s_nop 1')
        A(f'v_permlane16_swap_b32 v{v}, v{t}')
        A('s_nop 1')
        A(f'{op} v{v}, v{v}, v{t}')
        A(f'v_mov_b32 v{t}, v{v}')
        A('s_nop 1')
        A(f'v_permlane32_swap_b32 v{v}, v{t}')
        A('s_nop 1')
        A(f'{op} v{v}, v{v}, v{t}')

    def sum_rows_multi(self, vs, ts, op='v_add_f32'):
        A = self.A
        for swap in ('v_permlane16_swap_b32', 'v_permlane32_swap_b32'):
            for v, t in zip(vs, ts):
                A(f'v_mov_b32 v{t}, v{v}')
            A('s_nop 1')
            for v, t in zip(vs, ts):
                A(f'{swap} v{v}, v{t}')
            A('s_nop 1')
            for v, t in zip(vs, ts):
                A(f'{op} v{v}, v{v}, v{t}')

    def header(self):
        L = self.L
        L.append(f'; @launch grid=(256,1,1) block=(320,1,1) lds={LDS_BYTES}')
        L.append('.amdgcn_target "amdgcn-amd-amdhsa--gfx950"')
        L.append('.text')
        L.append(f'.globl {KN}_kernel')
        L.append('.p2align 8')
        L.append(f'.type {KN}_kernel,@function')
        L.append(f'{KN}_kernel:')

    def footer(self):
        L = self.L
        L.append('.section .rodata,"a"')
        L.append('.p2align 6')
        L.append(f'.amdhsa_kernel {KN}_kernel')
        L.append('  .amdhsa_next_free_vgpr 256')
        L.append('  .amdhsa_next_free_sgpr 102')
        L.append('  .amdhsa_accum_offset 256')
        L.append('  .amdhsa_group_segment_fixed_size 0')
        L.append('  .amdhsa_kernarg_size 96')
        L.append('  .amdhsa_user_sgpr_count 2')
        L.append('  .amdhsa_user_sgpr_kernarg_segment_ptr 1')
        L.append('  .amdhsa_system_sgpr_workgroup_id_x 1')
        L.append('.end_amdhsa_kernel')

    def prologue(self):
        A = self.A
        if self.stamps:
            A('s_memrealtime s[96:97]')
        A('s_cmp_ge_u32 s2, 256')
        A('s_cbranch_scc1 L_end')
        A('s_load_dwordx16 s[4:19], s[0:1], 0')
        A('s_load_dwordx8 s[20:27], s[0:1], 64')
        A('v_lshrrev_b32 v1, 6, v0')
        A('v_and_b32 v0, 63, v0')
        A('s_and_b32 s29, s2, 7')
        A('v_readfirstlane_b32 s28, v1')
        A('s_lshr_b32 s30, s2, 3')
        A('s_lshr_b32 s31, s30, 4')
        A('s_and_b32 s32, s30, 15')
        A('s_lshr_b32 s33, s30, 3')
        A('s_and_b32 s34, s30, 7')
        A('s_lshr_b32 s40, s29, 1')
        A('s_mul_i32 s40, s40, 7')
        A('s_and_b32 s41, s29, 1')
        A('s_lshl_b32 s42, s41, 2')
        A('s_add_u32 s40, s40, s42')
        A('s_sub_u32 s41, 4, s41')
        if self.stamps:
            A('v_mov_b32 v10, 0')
        A('s_cmp_eq_u32 s28, 4')
        A('s_cbranch_scc1 L_loader')

    def loader(self):
        A = self.A
        self.lab('L_loader')
        A('v_lshrrev_b32 v4, 4, v0')
        A('v_and_b32 v5, 15, v0')
        for q in range(4):
            A(f'v_add_u32 v6, {4*q}, v4')
            A('v_xor_b32 v6, v6, v5')
            A('v_lshlrev_b32 v6, 4, v6')
            A(f'v_lshl_add_u32 v{20+q}, v4, 8, v6')
        for q in range(2):
            A(f'v_add_u32 v6, {4*q}, v4')
            A('v_lshlrev_b32 v6, 1, v6')
            A('v_xor_b32 v6, v6, v5')
            A('v_lshlrev_b32 v6, 4, v6')
            A(f'v_lshl_add_u32 v{24+q}, v4, 8, v6')
        A('v_lshrrev_b32 v4, 3, v0')
        A('v_and_b32 v5, 7, v0')
        A('v_and_b32 v6, 2, v4')
        A('v_xor_b32 v5, v5, v6')
        A('v_lshlrev_b32 v5, 4, v5')
        A('v_xor_b32 v6, 64, v5')
        A('v_lshl_add_u32 v26, v4, 13, v5')
        A('v_lshl_add_u32 v27, v4, 13, v6')
        A('v_lshl_add_u32 v28, v4, 10, v5')
        A('v_lshl_add_u32 v29, v4, 10, v6')
        A('v_mul_u32_u24 v7, 3584, v4')
        A('v_add_u32 v30, v7, v5')
        A('v_add_u32 v31, v7, v6')
        A('v_lshlrev_b32 v3, 4, v0')
        A('v_lshlrev_b32 v15, 2, v0')
        A(f'v_add_u32 v15, {F_PROG}, v15')
        A('s_lshl_b32 s43, s31, 3')
        A('s_add_u32 s43, s43, s29')
        A('s_lshl_b32 s43, s43, 23')
        A('s_lshl_b32 s44, s32, 16')
        A('s_add_u32 s43, s43, s44')
        A('s_add_u32 s43, s43, 0x700000')
        A('s_lshl_b32 s44, s33, 20')
        A('s_lshl_b32 s45, s29, 10')
        A('s_add_u32 s44, s44, s45')
        A('s_lshl_b32 s45, s34, 7')
        A('s_add_u32 s44, s44, s45')
        A('s_lshl_b32 s46, s29, 2')
        A('s_add_u32 s46, s46, s33')
        A('s_lshl_b32 s46, s46, 17')
        A('s_add_u32 s46, s46, s45')
        A('s_add_u32 s47, s40, s33')
        A('s_lshl_b32 s47, s47, 16')
        A('s_add_u32 s47, s47, s45')
        A('s_cmp_lt_u32 s33, s41')
        A(f's_cselect_b32 s78, {63*1024+128}, 0')
        A('s_cselect_b32 s47, s47, 0')
        A('s_and_b32 s48, s30, 3')
        A('s_lshr_b32 s49, s30, 2')
        A(f's_mul_i32 s49, s49, {64*3584}')
        A('s_cmp_lt_u32 s48, s41')
        A(f's_cselect_b32 s82, {63*3584+128}, 0')
        A('s_cselect_b32 s50, 1, 0')
        A('s_add_u32 s48, s48, s40')
        A('s_lshl_b32 s48, s48, 7')
        A('s_add_u32 s48, s48, s49')
        A('s_mul_i32 s48, s48, s50')
        A(f's_mul_i32 s51, s2, {self.rotmul}')
        A('s_and_b32 s51, s51, 60')
        A('s_lshl_b32 s51, s51, 10')
        A('s_waitcnt lgkmcnt(0)')

        def srd(n, lo, off, size):
            if off is None:
                A(f's_mov_b32 s{n}, s{lo}')
                A(f's_mov_b32 s{n+1}, s{lo+1}')
            else:
                A(f's_add_u32 s{n}, s{lo}, {off}')
                A(f's_addc_u32 s{n+1}, s{lo+1}, 0')
            if size is not None:
                A(f's_mov_b32 s{n+2}, {size}')
            A(f's_mov_b32 s{n+3}, 0x20000')

        groups = []
        nt = ' nt'

        def g_kv(srdn, ldsbase, vbase, nvar, pre_first=None):
            for gi in range(16):
                pre = []
                if gi == 0 and pre_first:
                    pre += pre_first
                pre += [f's_add_u32 s52, s51, {gi*4096}', 's_and_b32 s52, s52, 0xffff',
                        f's_mov_b32 m0, {ldsbase + gi*4096}', 's_nop 0']
                body = [f'buffer_load_dwordx4 v{vbase + (i % nvar)}, s[{srdn}:{srdn+3}], s52 offen offset:{i*1024}{nt} lds'
                        for i in range(4)]
                groups.append([pre, body, None])

        def g_rows(srdn, ldsbase, v, npieces, stride):
            for g0 in range(0, npieces, 4):
                body = []
                for p in range(g0, g0 + 4):
                    body.append(f's_mov_b32 m0, {ldsbase + p*1024}')
                    body.append(f's_mov_b32 s52, {p*8*stride}')
                    body.append(f'buffer_load_dwordx4 v{v + (p & 1)}, s[{srdn}:{srdn+3}], s52 offen{nt} lds')
                groups.append([[], body, None])

        groups.append([[f's_mov_b32 m0, {L_X}', 's_nop 0'],
                       ['buffer_load_dwordx4 v3, s[84:87], 0 offen lds',
                        'buffer_load_dwordx4 v3, s[84:87], 0 offen offset:1024 lds',
                        f's_mov_b32 m0, {L_G}', 's_nop 0',
                        'buffer_load_dwordx4 v3, s[88:91], 0 offen lds'], None])
        g_rows(68, L_WQ, 26, 16, 8192)
        g_rows(80, L_W1, 30, 8, 3584)
        g_kv(60, L_K, 20, 4)
        g_rows(76, L_W2, 28, 8, 1024)
        g_kv(64, L_V, 24, 2)
        g_rows(72, L_WO, 28, 16, 1024)
        assert len(groups) == NGROUPS
        cons_at = 25 + 10
        cnt = lambda g: sum(1 for x in g[1] if x.startswith('buffer_load'))
        ends = []
        tot = 0
        for g in groups:
            tot += cnt(g)
            ends.append(tot)

        setup = {
            0: lambda: (srd(84, 4, None, 2048), srd(88, 20, None, 1024)),
            1: lambda: srd(68, 10, 's44', 127 * 8192 + 128),
            5: lambda: srd(80, 16, 's48', None),
            7: lambda: srd(60, 6, 's43', 65536),
            23: lambda: srd(76, 18, 's47', None),
            25: lambda: srd(64, 8, 's43', 65536),
            41: lambda: srd(72, 12, 's46', 127 * 1024 + 128),
        }
        issued = 0
        landed = 0
        barrier_done = False

        def publish(n_landed):
            nonlocal landed
            k = landed
            while k < NGROUPS and ends[k] <= n_landed:
                k += 1
            if k > landed:
                landed = k
                A(f'v_mov_b32 v8, {k}')
                A('ds_write_b32 v15, v8')
                if self.stamps and k in (1, 5, 7, 23, 25, 33, 41, 45):
                    self.stamp({1: 2, 5: 3, 7: 4, 23: 5, 25: 6, 33: 7, 41: 8, 45: 9}[k])

        self.stamp(1)
        for gi, g in enumerate(groups):
            c = cnt(g)
            if issued + c > self.depth:
                if not barrier_done:
                    A('s_barrier')
                    barrier_done = True
                w = self.depth - c
                A(f's_waitcnt vmcnt({w})')
                publish(issued - w)
            if gi in setup:
                setup[gi]()
            if gi == cons_at:
                A(f'v_mov_b32 v7, {F_CONS}')
                l, d = self.spin_begin('cons')
                A('ds_read_b32 v9, v7')
                A('s_waitcnt lgkmcnt(0)')
                A('v_readfirstlane_b32 s53, v9')
                A('s_cmp_ge_u32 s53, 4')
                A(f's_cbranch_scc0 {l}')
                self.lab(d)
            for x in g[0]:
                A(x)
            for x in g[1]:
                A(x)
            issued += c
        A('v_lshrrev_b32 v4, 1, v0')
        A('v_lshlrev_b32 v4, 10, v4')
        A('v_and_b32 v5, 1, v0')
        A('v_lshl_add_u32 v4, v5, 4, v4')
        A('s_lshl_b32 s54, s29, 15')
        A('s_lshl_b32 s55, s31, 9')
        A('s_add_u32 s54, s54, s55')
        A('s_lshl_b32 s55, s32, 5')
        A('s_add_u32 s54, s54, s55')
        A(f's_add_u32 s54, s54, {W_OUT}')
        A('v_add_u32 v4, s54, v4')
        A('s_lshl_b32 s54, s31, 10')
        A('s_lshl_b32 s55, s29, 7')
        A('s_add_u32 s54, s54, s55')
        A('s_lshl_b32 s55, s32, 3')
        A('s_add_u32 s54, s54, s55')
        A('v_lshlrev_b32 v5, 2, v5')
        A('v_add_u32 v5, s54, v5')
        A(f's_load_dword s35, s[26:27], {W_EPOCH}')
        w = min(self.depth, issued)
        while w > 0:
            w = max(0, w - 4)
            A(f's_waitcnt vmcnt({w})')
            publish(issued - w)
        assert landed == NGROUPS
        A('s_waitcnt lgkmcnt(0)')
        A('s_add_u32 s35, s35, 1')
        A(f'v_mov_b32 v7, {F_OUT}')
        l, d = self.spin_begin('outw')
        A('ds_read_b32 v9, v7')
        A('s_waitcnt lgkmcnt(0)')
        A('v_readfirstlane_b32 s53, v9')
        A('s_cmp_ge_u32 s53, 4')
        A(f's_cbranch_scc0 {l}')
        self.lab(d)
        self.stamp(11)
        A(f's_mov_b32 s53, {SPIN_LIMIT}')
        l = self.newlab('fin')
        d = self.newlab('find')
        self.lab(l)
        A('global_load_dwordx4 v[16:19], v4, s[26:27] sc1')
        A('s_waitcnt vmcnt(0)')
        A('v_cmp_ne_u32 vcc, s35, v17')
        A('v_cmp_ne_u32 s[56:57], s35, v19')
        A('s_or_b64 vcc, vcc, s[56:57]')
        A(f's_cbranch_vccz {d}')
        A('s_sub_u32 s53, s53, 1')
        A(f's_cbranch_scc0 {l}')
        self.lab(d)
        self.stamp(12)
        for v in (16, 18):
            A(f'v_add_f32_dpp v{v}, v{v}, v{v} quad_perm:[2,3,0,1] row_mask:0xf bank_mask:0xf')
        A('s_nop 0')
        for v in (16, 18):
            A(f'v_add_f32_dpp v{v}, v{v}, v{v} row_ror:4 row_mask:0xf bank_mask:0xf')
        A('s_nop 0')
        for v in (16, 18):
            A(f'v_add_f32_dpp v{v}, v{v}, v{v} row_ror:8 row_mask:0xf bank_mask:0xf')
        self.sum_rows_multi([16, 18], [20, 21])
        A('v_cvt_pk_bf16_f32 v16, v16, v18')
        A('v_cmp_gt_u32 vcc, 2, v0')
        A('s_and_saveexec_b64 s[56:57], vcc')
        A('global_store_dword v5, v16, s[22:23]')
        A('s_mov_b64 exec, s[56:57]')
        A('s_cmp_lg_u32 s2, 0')
        A('s_cbranch_scc1 L_fin')
        A('v_mov_b32 v6, 0')
        A('v_mov_b32 v7, s35')
        A('v_cmp_eq_u32 vcc, 0, v0')
        A('s_and_saveexec_b64 s[56:57], vcc')
        A(f'global_store_dword v6, v7, s[26:27] offset:{W_EPOCH} sc1')
        A('s_mov_b64 exec, s[56:57]')
        A('s_branch L_fin')

    def main(self):
        A = self.A
        A('v_lshrrev_b32 v11, 4, v0')
        A('v_and_b32 v12, 15, v0')
        A('v_bfe_u32 v13, v0, 2, 2')
        A('v_and_b32 v14, 3, v0')
        A(f'v_mov_b32 v15, {F_PROG}')
        A('s_mov_b32 s39, 0')
        A('s_getreg_b32 s36, hwreg(HW_REG_XCC_ID, 0, 4)')
        A('s_lshr_b32 s58, s28, 1')
        A('s_and_b32 s59, s28, 1')
        A('s_cmp_lg_u32 s28, 0')
        A('s_cbranch_scc1 L_noinit')
        A('v_mov_b32 v1, 0')
        A('v_lshlrev_b32 v2, 2, v0')
        A(f'v_add_u32 v3, {F_PROG}, v2')
        A('ds_write_b32 v3, v1')
        A('v_cmp_gt_u32 vcc, 16, v0')
        A('s_and_saveexec_b64 s[56:57], vcc')
        A(f'ds_write_b32 v3, v1 offset:256')
        A('v_mov_b32 v1, -1')
        A(f'ds_write_b32 v3, v1 offset:320')
        A('s_mov_b64 exec, s[56:57]')
        self.lab('L_noinit')
        A('s_lshl_b32 s42, s29, 15')
        A('s_lshl_b32 s43, s30, 10')
        A('s_add_u32 s42, s42, s43')
        A(f's_add_u32 s60, s42, {W_O}')
        A('s_lshl_b32 s43, s28, 8')
        A('s_add_u32 s43, s43, s60')
        A('v_lshlrev_b32 v1, 4, v0')
        A('v_add_u32 v1, s43, v1')
        A('s_lshl_b32 s42, s29, 14')
        A('s_and_b32 s43, s30, 3')
        A('s_lshl_b32 s43, s43, 12')
        A('s_add_u32 s42, s42, s43')
        A('s_lshr_b32 s43, s30, 2')
        A('s_lshl_b32 s43, s43, 9')
        A('s_add_u32 s42, s42, s43')
        A(f's_add_u32 s61, s42, {W_H}')
        A('s_lshl_b32 s43, s28, 6')
        A('s_add_u32 s43, s43, s61')
        A('v_bfe_u32 v2, v0, 2, 1')
        A('v_lshlrev_b32 v2, 8, v2')
        A('v_lshl_add_u32 v2, v14, 4, v2')
        A('v_add_u32 v2, s43, v2')
        A('v_cmp_gt_u32 vcc, 16, v0')
        A('s_nop 1')
        A('v_cndmask_b32 v1, v2, v1, vcc')
        A('s_lshl_b32 s42, s29, 10')
        A('s_lshl_b32 s43, s28, 8')
        A('s_add_u32 s42, s42, s43')
        A('s_lshl_b32 s43, s30, 3')
        A('s_add_u32 s42, s42, s43')
        A(f's_add_u32 s62, s42, {W_ML}')
        A('v_mov_b32 v3, s62')
        A('v_mov_b32 v4, -1')
        A('v_mov_b32 v5, -1')
        A('v_mov_b32 v6, -1')
        A('v_mov_b32 v7, -1')
        A(f'v_add_u32 v2, {W_B}, v1')
        A(f'v_add_u32 v8, {W_B}, v3')
        A('s_waitcnt lgkmcnt(0)')
        A(f's_load_dword s35, s[26:27], {W_EPOCH}')
        A('v_cmp_gt_u32 vcc, 24, v0')
        A('s_and_saveexec_b64 s[56:57], vcc')
        A('global_store_dwordx4 v1, v[4:7], s[26:27]')
        A('global_store_dwordx4 v2, v[4:7], s[26:27] sc1')
        A('s_mov_b64 exec, 1')
        A('global_store_dwordx2 v3, v[4:5], s[26:27]')
        A('global_store_dwordx2 v8, v[4:5], s[26:27] sc1')
        A('s_mov_b64 exec, s[56:57]')
        A('v_lshl_add_u32 v1, v11, 3, v13')
        A('v_lshlrev_b32 v1, 7, v1')
        A('v_lshl_add_u32 v1, v14, 3, v1')
        A('v_lshrrev_b32 v2, 1, v13')
        A('v_and_b32 v3, 1, v11')
        A('v_lshl_or_b32 v2, v3, 1, v2')
        A('v_xor_b32 v3, s28, v2')
        A('v_lshl_add_u32 v3, v3, 5, v1')
        A(f'v_add_u32 v16, {L_WQ}, v3')
        A(f'v_add_u32 v17, {L_W1}, v3')
        A('s_lshl_b32 s42, s59, 1')
        A('v_xor_b32 v3, s42, v2')
        A('v_lshl_add_u32 v3, v3, 5, v1')
        A(f'v_add_u32 v18, {L_WO}, v3')
        A('v_xor_b32 v19, 32, v18')
        A('v_and_b32 v1, 1, v12')
        A('v_lshlrev_b32 v1, 10, v1')
        A('v_lshl_add_u32 v1, v11, 4, v1')
        A(f'v_add_u32 v1, {L_X}, v1')
        A('s_lshl_b32 s42, s33, 8')
        A('v_add_u32 v20, s42, v1')
        A('s_lshr_b32 s42, s30, 2')
        A('s_lshl_b32 s42, s42, 7')
        A('v_add_u32 v21, s42, v1')
        A('v_xor_b32 v1, v11, v12')
        A('s_lshl_b32 s42, s28, 14')
        A('v_lshlrev_b32 v2, 8, v12')
        A('v_add_u32 v2, s42, v2')
        for k in range(4):
            A(f'v_xor_b32 v3, {4*k}, v1')
            A(f'v_lshl_add_u32 v{22+k}, v3, 4, v2')
        A('v_lshl_add_u32 v1, v11, 2, v13')
        A('v_and_b32 v2, 7, v1')
        A('v_lshlrev_b32 v1, 8, v1')
        A('v_lshl_add_u32 v1, v14, 3, v1')
        A(f'v_add_u32 v1, {L_V}, v1')
        A('s_lshl_b32 s42, s28, 1')
        A('v_xor_b32 v2, s42, v2')
        A('v_lshl_add_u32 v26, v2, 5, v1')
        A('v_xor_b32 v27, 32, v26')
        A('s_barrier')
        self.stamp(1)

        self.wait_prog(P_X)
        A('v_lshlrev_b32 v1, 4, v0')
        A('s_lshl_b32 s42, s58, 10')
        A('v_add_u32 v2, s42, v1')
        A(f'v_add_u32 v2, {L_X}, v2')
        A(f'v_add_u32 v1, {L_G}, v1')
        A('ds_read_b128 v[32:35], v2')
        A('ds_read_b128 v[36:39], v1')
        for k in range(4):
            A(f'ds_read_b128 v[{40+4*k}:{43+4*k}], v20 offset:{64*k}')
        for k in range(2):
            A(f'ds_read_b128 v[{56+4*k}:{59+4*k}], v21 offset:{64*k}')
        A('v_mov_b32 v28, 0')
        A('s_waitcnt lgkmcnt(6)')
        for k in range(4):
            A(f'v_dot2c_f32_bf16 v28, v{32+k}, v{36+k}')
        A('s_nop 2')
        A('v_add_f32_dpp v28, v28, v28 quad_perm:[1,0,3,2] row_mask:0xf bank_mask:0xf')
        A('s_nop 1')
        A('v_add_f32_dpp v28, v28, v28 quad_perm:[2,3,0,1] row_mask:0xf bank_mask:0xf')
        A('s_nop 1')
        A('v_add_f32_dpp v28, v28, v28 row_ror:4 row_mask:0xf bank_mask:0xf')
        A('s_nop 1')
        A('v_add_f32_dpp v28, v28, v28 row_ror:8 row_mask:0xf bank_mask:0xf')
        self.sum_rows(28, 1)
        A(f's_mov_b32 s42, {LOG2E}')
        A('v_mul_f32 v28, s42, v28')
        A('v_sub_f32 v28, 0, v28')
        A('v_exp_f32 v28, v28')
        A('s_nop 0')
        A('v_add_f32 v28, 1.0, v28')
        A('v_rcp_f32 v28, v28')
        A('s_nop 0')
        A('v_sub_f32 v29, 1.0, v28')
        self.stamp(2)

        self.wait_prog(P_WQ)
        for k in range(4):
            for eta in range(2):
                A(f'ds_read_b64_tr_b16 v[{64+4*k+2*eta}:{65+4*k+2*eta}], v16 offset:{k*4096+eta*512}')
        for k in range(4):
            A(f's_waitcnt lgkmcnt({6-2*k})')
            c = '0' if k == 0 else 'v[80:83]'
            A(f'v_mfma_f32_16x16x32_bf16 v[80:83], v[{64+4*k}:{67+4*k}], v[{40+4*k}:{43+4*k}], {c}')
        A('s_lshl_b32 s42, s29, 14')
        A('s_lshl_b32 s43, s33, 11')
        A('s_add_u32 s42, s42, s43')
        A('s_lshl_b32 s43, s34, 8')
        A('s_add_u32 s42, s42, s43')
        A('s_lshl_b32 s43, s28, 6')
        A('s_add_u32 s42, s42, s43')
        A(f's_add_u32 s42, s42, {W_Q}')
        A('v_lshlrev_b32 v1, 13, v12')
        A('v_lshl_add_u32 v1, v11, 4, v1')
        A('v_add_u32 v1, s42, v1')
        A(f'v_add_u32 v2, {W_B}, v1')
        A('s_waitcnt lgkmcnt(0)')
        A('s_add_u32 s35, s35, 1')
        A('s_lshl_b32 s43, s36, 24')
        A('s_xor_b32 s43, s43, s35')
        A('s_nop 3')
        A('v_cvt_pk_bf16_f32 v4, v80, v81')
        A('v_mov_b32 v5, s35')
        A('v_cvt_pk_bf16_f32 v6, v82, v83')
        A('v_mov_b32 v7, s43')
        A('s_waitcnt vmcnt(0)')
        A('v_cmp_gt_u32 vcc, 2, v12')
        A('s_and_saveexec_b64 s[56:57], vcc')
        A('global_store_dwordx4 v1, v[4:7], s[26:27]')
        A('global_store_dwordx4 v2, v[4:7], s[26:27] sc1')
        A('s_mov_b64 exec, s[56:57]')
        self.stamp(3)

        self.wait_prog(P_W1)
        for k in range(2):
            for eta in range(2):
                A(f'ds_read_b64_tr_b16 v[{64+4*k+2*eta}:{65+4*k+2*eta}], v17 offset:{k*4096+eta*512}')
        for k in range(2):
            A(f's_waitcnt lgkmcnt({2-2*k})')
            c = '0' if k == 0 else 'v[80:83]'
            A(f'v_mfma_f32_16x16x32_bf16 v[80:83], v[{64+4*k}:{67+4*k}], v[{56+4*k}:{59+4*k}], {c}')
        A(f'v_mov_b32 v1, {F_CONS}')
        A('v_mov_b32 v2, 1')
        A('s_mov_b64 s[56:57], exec')
        A('s_mov_b64 exec, 1')
        A('ds_add_u32 v1, v2')
        A('s_mov_b64 exec, s[56:57]')
        A('s_lshl_b32 s42, s28, 6')
        A('s_add_u32 s42, s42, s61')
        A('v_lshlrev_b32 v1, 8, v12')
        A('v_lshl_add_u32 v1, v11, 4, v1')
        A('v_add_u32 v1, s42, v1')
        A(f'v_add_u32 v2, {W_B}, v1')
        A('s_and_b32 s42, s30, 3')
        A('s_cmp_lt_u32 s42, s41')
        A('s_cbranch_scc0 L_nohpub')
        A('v_cmp_gt_u32 vcc, 2, v12')
        A('s_and_saveexec_b64 s[56:57], vcc')
        A('global_store_dwordx4 v1, v[80:83], s[26:27]')
        A('global_store_dwordx4 v2, v[80:83], s[26:27] sc1')
        A('s_mov_b64 exec, s[56:57]')
        self.lab('L_nohpub')
        self.stamp(4)

        A('s_lshl_b32 s42, s29, 14')
        A('s_lshl_b32 s43, s31, 13')
        A('s_add_u32 s42, s42, s43')
        A('s_lshl_b32 s43, s28, 9')
        A('s_add_u32 s42, s42, s43')
        A(f's_add_u32 s42, s42, {W_Q}')
        A('v_lshrrev_b32 v1, 5, v0')
        A('v_lshlrev_b32 v1, 11, v1')
        A('v_and_b32 v2, 31, v0')
        A('v_lshl_add_u32 v1, v2, 4, v1')
        A('v_add_u32 v30, s42, v1')
        A('s_mov_b32 s44, 0')
        lq = self.newlab('qpoll')
        dq = self.newlab('qdone')
        self.lab(lq)
        A(f's_cmp_lt_u32 s44, {self.na}')
        A('s_cselect_b32 s45, 0, s44')
        A('s_and_b32 s45, s45, 1')
        A(f's_mul_i32 s45, s45, {W_B}')
        A('v_add_u32 v1, s45, v30')
        A('v_add_u32 v2, 4096, v1')
        A('global_load_dwordx4 v[32:35], v1, s[26:27] sc1')
        A('global_load_dwordx4 v[36:39], v2, s[26:27] sc1')
        A('s_waitcnt vmcnt(0)')
        A('v_xor_b32 v33, s35, v33')
        A('v_xor_b32 v35, s35, v35')
        A('v_xor_b32 v37, s35, v37')
        A('v_xor_b32 v39, s35, v39')
        A('v_or_b32 v3, v35, v39')
        A('v_and_b32 v3, 0xf0ffffff, v3')
        A('v_or3_b32 v3, v3, v33, v37')
        A('v_cmp_ne_u32 vcc, 0, v3')
        A(f's_cbranch_vccz {dq}')
        A('s_add_u32 s44, s44, 1')
        A(f's_cmp_lt_u32 s44, {SPIN_LIMIT}')
        A(f's_cbranch_scc1 {lq}')
        self.lab(dq)
        A('s_lshl_b32 s43, s36, 24')
        A('v_cmp_ne_u32 vcc, s43, v35')
        A('v_cmp_ne_u32 s[56:57], s43, v39')
        A('s_or_b64 vcc, vcc, s[56:57]')
        A('s_cmp_eq_u64 vcc, 0')
        A('s_cselect_b32 s45, 3, 1')
        for src in (32, 36):
            for d in range(2):
                A(f'v_lshlrev_b32 v{40 + (src-32) + 2*d}, 16, v{src + 2*d}')
                A(f'v_and_b32 v{41 + (src-32) + 2*d}, 0xffff0000, v{src + 2*d}')
        for k in range(4):
            A(f'v_add_f32 v{40+k}, v{40+k}, v{44+k}')
        for k in range(4):
            A(f'v_mov_b32 v{44+k}, v{40+k}')
        A('s_nop 1')
        for k in range(4):
            A(f'v_permlane32_swap_b32 v{40+k}, v{44+k}')
        A('s_nop 1')
        for k in range(4):
            A(f'v_add_f32 v{40+k}, v{40+k}, v{44+k}')
        A('v_cvt_pk_bf16_f32 v4, v40, v41')
        A('v_cvt_pk_bf16_f32 v5, v42, v43')
        A('v_and_b32 v2, 31, v0')
        A('v_lshlrev_b32 v2, 3, v2')
        A('s_lshl_b32 s42, s28, 8')
        A(f's_add_u32 s42, s42, {L_QST}')
        A('v_add_u32 v2, s42, v2')
        A('ds_write_b64 v2, v[4:5]')
        A('s_lshl_b32 s42, s28, 2')
        A(f's_add_u32 s42, s42, {F_QRDY}')
        A('v_mov_b32 v1, s42')
        A('v_mov_b32 v2, s45')
        A('s_waitcnt lgkmcnt(0)')
        A('s_mov_b64 s[56:57], exec')
        A('s_mov_b64 exec, 1')
        A('ds_write_b32 v1, v2')
        A('s_mov_b64 exec, s[56:57]')
        self.stamp(5)
        A(f'v_mov_b32 v1, {F_QRDY}')
        A('s_mov_b32 s45, 1')
        l, d = self.spin_begin('qrdy')
        A('ds_read_b128 v[4:7], v1')
        A('s_waitcnt lgkmcnt(0)')
        A('v_and_b32 v4, v4, v5')
        A('v_and_b32 v6, v6, v7')
        A('v_and_b32 v4, v4, v6')
        A('s_nop 0')
        A('v_readfirstlane_b32 s45, v4')
        A('s_bitcmp1_b32 s45, 0')
        A(f's_cbranch_scc0 {l}')
        self.lab(d)
        A('s_bitcmp1_b32 s45, 1')
        A(f's_cselect_b32 s37, 0, {W_B}')
        A('s_lshl_b32 s42, s29, 14')
        A('s_lshl_b32 s43, s33, 12')
        A('s_add_u32 s42, s42, s43')
        A(f's_add_u32 s42, s42, {W_H}')
        A('s_add_u32 s42, s42, s37')
        A('v_lshlrev_b32 v31, 4, v0')
        A('v_add_u32 v31, s42, v31')
        for k in range(4):
            A(f'global_load_dwordx4 v[{208+4*k}:{211+4*k}], v31, s[26:27] offset:{1024*k} sc1')
        A('v_lshlrev_b32 v1, 8, v14')
        A('v_lshl_add_u32 v1, v11, 4, v1')
        A(f'v_add_u32 v1, {L_QST}, v1')
        for k in range(4):
            A(f'ds_read_b128 v[{32+4*k}:{35+4*k}], v1 offset:{64*k}')
        self.stamp(6)

        self.wait_prog(P_K)
        A('s_waitcnt lgkmcnt(0)')
        for t in range(4):
            for k in range(4):
                A(f'ds_read_b128 v[{64+16*t+4*k}:{67+16*t+4*k}], v{22+k} offset:{t*4096}')
        for t in range(4):
            A(f's_waitcnt lgkmcnt({12-4*t})')
            for k in range(4):
                c = '0' if k == 0 else f'v[{48+4*t}:{51+4*t}]'
                A(f'v_mfma_f32_16x16x32_bf16 v[{48+4*t}:{51+4*t}], v[{64+16*t+4*k}:{67+16*t+4*k}], v[{32+4*k}:{35+4*k}], {c}')
        A('s_nop 7')
        A('v_max3_f32 v1, v48, v49, v50')
        A('v_max3_f32 v2, v51, v52, v53')
        A('v_max3_f32 v3, v54, v55, v56')
        A('v_max3_f32 v4, v57, v58, v59')
        A('v_max3_f32 v1, v1, v60, v61')
        A('v_max3_f32 v2, v2, v62, v63')
        A('v_max3_f32 v1, v1, v3, v4')
        A('v_max_f32 v1, v1, v2')
        self.sum_rows(1, 2, 'v_max_f32')
        A('s_lshl_b32 s42, s28, 2')
        A(f's_add_u32 s42, s42, {F_MX}')
        A('v_lshlrev_b32 v2, 4, v14')
        A('v_add_u32 v3, s42, v2')
        A(f'v_add_u32 v2, {F_MX}, v2')
        A('v_cmp_gt_u32 vcc, 4, v0')
        A('s_and_saveexec_b64 s[56:57], vcc')
        A('ds_write_b32 v3, v1')
        A('s_mov_b64 exec, s[56:57]')
        l, d = self.spin_begin('mx')
        A('ds_read_b128 v[4:7], v2')
        A('s_waitcnt lgkmcnt(0)')
        A('v_max_u32 v8, v4, v5')
        A('v_max3_u32 v8, v8, v6, v7')
        A('v_cmp_eq_u32 vcc, -1, v8')
        A(f's_cbranch_vccnz {l}')
        self.lab(d)
        A('v_max3_f32 v1, v4, v5, v6')
        A('v_max_f32 v1, v1, v7')
        A(f's_mov_b32 s42, {SCALE_C}')
        A('v_mul_f32 v30, s42, v1')
        for r in range(16):
            A(f'v_fma_f32 v{48+r}, v{48+r}, s42, -v30')
        for r in range(16):
            A(f'v_exp_f32 v{48+r}, v{48+r}')
        A('s_nop 0')
        for u in range(2):
            for q in range(4):
                A(f'v_cvt_pk_bf16_f32 v{64+4*u+q}, v{48+8*u+2*q}, v{49+8*u+2*q}')
        A('v_lshlrev_b32 v1, 4, v0')
        A('s_lshl_b32 s42, s28, 14')
        A('v_add_u32 v2, s42, v1')
        A('ds_write_b128 v2, v[64:67]')
        A('ds_write_b128 v2, v[68:71] offset:1024')
        A('s_lshl_b32 s42, s28, 2')
        A(f's_add_u32 s42, s42, {F_PRDY}')
        A('v_mov_b32 v3, s42')
        A('v_mov_b32 v4, 1')
        A('s_waitcnt lgkmcnt(0)')
        A('s_mov_b64 s[56:57], exec')
        A('s_mov_b64 exec, 1')
        A('ds_write_b32 v3, v4')
        A('s_mov_b64 exec, s[56:57]')
        self.stamp(7)
        A(f'v_mov_b32 v3, {F_PRDY}')
        l, d = self.spin_begin('prdy')
        A('ds_read_b128 v[4:7], v3')
        A('s_waitcnt lgkmcnt(0)')
        A('v_and_b32 v4, v4, v5')
        A('v_and_b32 v6, v6, v7')
        A('v_and_b32 v4, v4, v6')
        A('s_nop 0')
        A('v_readfirstlane_b32 s45, v4')
        A('s_cmp_eq_u32 s45, 1')
        A(f's_cbranch_scc0 {l}')
        self.lab(d)
        for U in range(8):
            A(f'ds_read_b128 v[{64+4*U}:{67+4*U}], v1 offset:{(U>>1)*16384 + (U&1)*1024}')
        for r in range(4):
            A(f'v_mov_b32 v{32+r}, 0x3f803f80')
            A(f'v_mov_b32 v{36+r}, 0')
            A(f'v_mov_b32 v{40+r}, 0')
            A(f'v_mov_b32 v{44+r}, 0')
        A('s_waitcnt lgkmcnt(0)')
        for U in range(8):
            A(f'v_mfma_f32_16x16x32_bf16 v[36:39], v[32:35], v[{64+4*U}:{67+4*U}], v[36:39]')
        self.stamp(8)

        for U in range(8):
            self.wait_prog(P_V0 + 2 * (U + 1))
            base = 96 + 8 * (U & 1)
            for ds in range(2):
                for eta in range(2):
                    A(f'ds_read_b64_tr_b16 v[{base+4*ds+2*eta}:{base+4*ds+2*eta+1}], v{26+ds} offset:{U*8192+eta*4096}')
            A('s_waitcnt lgkmcnt(2)')
            A(f'v_mfma_f32_16x16x32_bf16 v[40:43], v[{base}:{base+3}], v[{64+4*U}:{67+4*U}], v[40:43]')
            A('s_waitcnt lgkmcnt(0)')
            A(f'v_mfma_f32_16x16x32_bf16 v[44:47], v[{base+4}:{base+7}], v[{64+4*U}:{67+4*U}], v[44:47]')
        self.stamp(9)
        A('v_lshlrev_b32 v1, 8, v14')
        A('v_bfe_u32 v2, v0, 2, 1')
        A('v_lshl_add_u32 v1, v2, 5, v1')
        A('v_lshl_add_u32 v1, v11, 3, v1')
        A('s_lshl_b32 s42, s28, 6')
        A('s_add_u32 s42, s42, s60')
        A('s_add_u32 s42, s42, s37')
        A('v_add_u32 v1, s42, v1')
        A('v_cmp_eq_u32 vcc, 1, v2')
        A('s_add_u32 s43, s62, s37')
        A('v_mov_b32 v3, s43')
        A('s_nop 3')
        for r in range(4):
            A(f'v_cndmask_b32 v{4+r}, v{40+r}, v{44+r}, vcc')
        A('v_cvt_pk_bf16_f32 v4, v4, v5')
        A('v_cvt_pk_bf16_f32 v5, v6, v7')
        A('v_mov_b32 v6, v30')
        A('v_mov_b32 v7, v36')
        A('v_cmp_gt_u32 vcc, 8, v12')
        A('v_cmp_eq_u32 s[44:45], s28, v0')
        A('s_mov_b64 s[56:57], exec')
        A('s_cmp_eq_u32 s37, 0')
        A('s_cbranch_scc0 L_opub_far')
        A('s_mov_b64 exec, vcc')
        A('global_store_dwordx2 v1, v[4:5], s[26:27]')
        A('s_mov_b64 exec, s[44:45]')
        A('global_store_dwordx2 v3, v[6:7], s[26:27]')
        A('s_branch L_opub_done')
        self.lab('L_opub_far')
        A('s_mov_b64 exec, vcc')
        A('global_store_dwordx2 v1, v[4:5], s[26:27] sc1')
        A('s_mov_b64 exec, s[44:45]')
        A('global_store_dwordx2 v3, v[6:7], s[26:27] sc1')
        self.lab('L_opub_done')
        A('s_mov_b64 exec, s[56:57]')
        self.stamp(10)

        for r in range(4):
            A(f'v_mov_b32 v{48+r}, 0')
            A(f'v_mov_b32 v{52+r}, 0')
        A('s_cmp_lt_u32 s33, s41')
        A('s_cbranch_scc0 L_noffn')
        A(f's_mov_b32 s44, {SPIN_LIMIT}')
        l = self.newlab('hpoll')
        d = self.newlab('hdone')
        self.lab(l)
        A('s_waitcnt vmcnt(0)')
        A('v_max3_u32 v1, v208, v209, v210')
        for k in range(211, 223, 2):
            A(f'v_max3_u32 v1, v1, v{k}, v{k+1}')
        A('v_max_u32 v1, v1, v223')
        A('v_cmp_eq_u32 vcc, -1, v1')
        A(f's_cbranch_vccz {d}')
        for k in range(4):
            A(f'global_load_dwordx4 v[{208+4*k}:{211+4*k}], v31, s[26:27] offset:{1024*k} sc1')
        A('s_sub_u32 s44, s44, 1')
        A(f's_cbranch_scc0 {l}')
        self.lab(d)
        for q in range(4):
            A(f'v_add_f32 v{208+q}, v{208+q}, v{212+q}')
            A(f'v_add_f32 v{216+q}, v{216+q}, v{220+q}')
        for q in range(4):
            A(f'v_add_f32 v{208+q}, v{208+q}, v{216+q}')
            A(f'v_mov_b32 v{212+q}, v{208+q}')
        A('s_nop 1')
        for q in range(4):
            A(f'v_permlane32_swap_b32 v{208+q}, v{212+q}')
        A('s_nop 1')
        A(f's_mov_b32 s42, {LOG2E}')
        for q in range(4):
            A(f'v_add_f32 v{208+q}, v{208+q}, v{212+q}')
        for q in range(4):
            A(f'v_mul_f32 v{212+q}, s42, v{208+q}')
            A(f'v_sub_f32 v{212+q}, 0, v{212+q}')
        for q in range(4):
            A(f'v_exp_f32 v{212+q}, v{212+q}')
        A('s_nop 0')
        for q in range(4):
            A(f'v_add_f32 v{212+q}, 1.0, v{212+q}')
        for q in range(4):
            A(f'v_rcp_f32 v{212+q}, v{212+q}')
        A('s_nop 0')
        for q in range(4):
            A(f'v_mul_f32 v{208+q}, v{208+q}, v{212+q}')
        A('v_cvt_pk_bf16_f32 v4, v208, v209')
        A('v_cvt_pk_bf16_f32 v5, v210, v211')
        A('v_and_b32 v1, 31, v0')
        A('v_lshlrev_b32 v1, 3, v1')
        A('s_lshl_b32 s42, s28, 8')
        A(f's_add_u32 s42, s42, {L_HST}')
        A('v_add_u32 v1, s42, v1')
        A('ds_write_b64 v1, v[4:5]')
        A('v_and_b32 v1, 1, v12')
        A('v_lshlrev_b32 v1, 7, v1')
        A('v_lshl_add_u32 v1, v11, 4, v1')
        A('v_add_u32 v1, s42, v1')
        A('s_waitcnt lgkmcnt(0)')
        A('ds_read_b128 v[56:59], v1')
        A('ds_read_b128 v[60:63], v1 offset:64')
        self.wait_prog(P_W2)
        for t in range(2):
            for k in range(2):
                for eta in range(2):
                    rb = 96 + 8*t + 4*k + 2*eta
                    A(f'ds_read_b64_tr_b16 v[{rb}:{rb+1}], v{18+t} offset:{L_W2-L_WO + k*4096 + eta*512}')
        A('s_waitcnt lgkmcnt(0)')
        for k in range(2):
            for t in range(2):
                A(f'v_mfma_f32_16x16x32_bf16 v[{48+4*t}:{51+4*t}], v[{56+4*k}:{59+4*k}], v[{96+8*t+4*k}:{99+8*t+4*k}], v[{48+4*t}:{51+4*t}]')
        self.lab('L_noffn')
        self.stamp(11)

        A('s_lshl_b32 s42, s29, 15')
        A('s_lshl_b32 s43, s58, 14')
        A('s_add_u32 s42, s42, s43')
        A('s_lshl_b32 s43, s33, 8')
        A('s_add_u32 s42, s42, s43')
        A(f's_add_u32 s42, s42, {W_O}')
        A('s_add_u32 s42, s42, s37')
        A('v_lshlrev_b32 v1, 10, v12')
        A('v_lshl_add_u32 v1, v11, 4, v1')
        A('v_add_u32 v1, s42, v1')
        A('s_lshl_b32 s42, s29, 10')
        A('s_lshl_b32 s43, s33, 8')
        A('s_add_u32 s42, s42, s43')
        A('s_lshl_b32 s43, s58, 7')
        A('s_add_u32 s42, s42, s43')
        A(f's_add_u32 s42, s42, {W_ML}')
        A('s_add_u32 s42, s42, s37')
        A('v_lshlrev_b32 v2, 5, v11')
        A('v_add_u32 v2, s42, v2')
        A(f's_mov_b32 s44, {SPIN_LIMIT}')
        l = self.newlab('opoll')
        d = self.newlab('odone')
        self.lab(l)
        for k in range(4):
            A(f'global_load_dwordx4 v[{64+4*k}:{67+4*k}], v1, s[26:27] offset:{64*k} sc1')
        A('global_load_dwordx4 v[80:83], v2, s[26:27] sc1')
        A('global_load_dwordx4 v[84:87], v2, s[26:27] offset:16 sc1')
        A('s_waitcnt vmcnt(0)')
        A('v_max3_u32 v3, v64, v65, v66')
        for k in range(67, 87, 2):
            A(f'v_max3_u32 v3, v3, v{k}, v{k+1}')
        A('v_max_u32 v3, v3, v87')
        A('v_cmp_eq_u32 vcc, -1, v3')
        A(f's_cbranch_vccz {d}')
        A('s_sub_u32 s44, s44, 1')
        A(f's_cbranch_scc0 {l}')
        self.lab(d)
        self.stamp(12)
        A('v_max3_f32 v3, v80, v82, v84')
        A('v_max_f32 v3, v3, v86')
        self.sum_rows(3, 4, 'v_max_f32')
        for r in range(4):
            A(f'v_sub_f32 v{80+2*r}, v{80+2*r}, v3')
        for r in range(4):
            A(f'v_exp_f32 v{80+2*r}, v{80+2*r}')
        A('s_nop 0')
        A('v_mul_f32 v3, v80, v81')
        for r in range(1, 4):
            A(f'v_fmac_f32 v3, v{80+2*r}, v{81+2*r}')
        self.sum_rows(3, 4)
        A('v_rcp_f32 v3, v3')
        A('s_nop 0')
        A('v_mul_f32 v3, v3, v28')
        for r in range(4):
            A(f'v_mul_f32 v{80+2*r}, v{80+2*r}, v3')
        for k in range(4):
            self.wait_prog(P_WO0 + k + 1)
            for t in range(2):
                for eta in range(2):
                    rb = 96 + 8*(k & 1) + 4*t + 2*eta
                    A(f'ds_read_b64_tr_b16 v[{rb}:{rb+1}], v{18+t} offset:{k*4096 + eta*512}')
            rb = 96 + 8*(k & 1)
            A('s_waitcnt lgkmcnt(2)')
            c0 = '0' if k == 0 else 'v[88:91]'
            c1 = '0' if k == 0 else 'v[92:95]'
            A(f'v_mfma_f32_16x16x32_bf16 v[88:91], v[{64+4*k}:{67+4*k}], v[{rb}:{rb+3}], {c0}')
            A('s_waitcnt lgkmcnt(0)')
            A(f'v_mfma_f32_16x16x32_bf16 v[92:95], v[{64+4*k}:{67+4*k}], v[{rb+4}:{rb+7}], {c1}')
        A('s_nop 7')
        for t in range(2):
            A(f'v_mul_f32 v{4+t}, v80, v{88+4*t}')
        for r in range(1, 4):
            for t in range(2):
                A(f'v_fmac_f32 v{4+t}, v{80+2*r}, v{88+4*t+r}')
        self.sum_rows_multi([4, 5], [6, 7])
        A('s_cmp_eq_u32 s58, 0')
        A('s_cselect_b64 vcc, -1, 0')
        A('v_cndmask_b32 v6, v49, v48, vcc')
        A('v_cndmask_b32 v7, v53, v52, vcc')
        A('v_fmac_f32 v4, v29, v6')
        A('v_fmac_f32 v5, v29, v7')
        A('v_cmp_eq_u32 vcc, 1, v11')
        A('s_nop 1')
        A('v_cndmask_b32 v4, v4, v5, vcc')
        A('s_nop 1')
        A('v_mov_b32_dpp v6, v4 quad_perm:[1,0,3,2] row_mask:0xf bank_mask:0xf')
        A('v_mov_b32 v5, s35')
        A('v_mov_b32 v7, s35')
        A('s_lshl_b32 s42, s34, 15')
        A('s_lshl_b32 s43, s29, 12')
        A('s_add_u32 s42, s42, s43')
        A('s_lshl_b32 s43, s33, 10')
        A('s_add_u32 s42, s42, s43')
        A('s_lshl_b32 s43, s58, 9')
        A('s_add_u32 s42, s42, s43')
        A('s_lshl_b32 s43, s59, 8')
        A('s_add_u32 s42, s42, s43')
        A(f's_add_u32 s42, s42, {W_OUT}')
        A('v_lshlrev_b32 v1, 3, v0')
        A('v_add_u32 v1, s42, v1')
        A('v_and_b32 v2, 33, v0')
        A('v_cmp_eq_u32 vcc, 0, v2')
        A('s_and_saveexec_b64 s[56:57], vcc')
        A('global_store_dwordx4 v1, v[4:7], s[26:27] sc1')
        A('s_mov_b64 exec, 1')
        A(f'v_mov_b32 v1, {F_OUT}')
        A('v_mov_b32 v2, 1')
        A('ds_add_u32 v1, v2')
        A('s_mov_b64 exec, s[56:57]')
        self.stamp(13)

    def epilogue(self):
        A = self.A
        self.lab('L_fin')
        if self.stamps and self.dbg:
            A('s_mul_i32 s42, s2, 0x9d')
            A('s_and_b32 s42, s42, 31')
            A('s_cmp_lg_u32 s42, 0')
            A('s_cbranch_scc1 L_end')
            A('s_not_b32 s96, s96')
            A('v_writelane_b32 v10, s96, 0')
            lm = {0: 0, 1: 1, 2: 2, 3: 3, 5: 4, 8: 5, 9: 6, 11: 7, 12: 8}
            mm = {0: 0, 3: 9, 5: 10, 7: 11, 9: 12, 12: 13, 13: 14, 2: 15}
            A('v_mov_b32 v1, -1')
            A('s_cmp_eq_u32 s28, 4')
            A('s_cbranch_scc1 L_dbg_l')
            for k, v in mm.items():
                A(f's_mov_b32 s42, {v*4}')
                A(f'v_writelane_b32 v1, s42, {k}')
            A('s_branch L_dbg_s')
            self.lab('L_dbg_l')
            for k, v in lm.items():
                A(f's_mov_b32 s42, {v*4}')
                A(f'v_writelane_b32 v1, s42, {k}')
            self.lab('L_dbg_s')
            A('v_cmp_ne_u32 vcc, -1, v1')
            A('s_and_saveexec_b64 s[56:57], vcc')
            A('global_atomic_umax v1, v10, s[24:25]')
            A('s_mov_b64 exec, s[56:57]')
        elif self.stamps:
            A('v_writelane_b32 v10, s96, 0')
            A('s_mul_i32 s42, s2, 5')
            A('s_add_u32 s42, s42, s28')
            A('s_lshl_b32 s42, s42, 8')
            A(f's_add_u32 s42, s42, {W_STAMP}')
            A('v_lshlrev_b32 v1, 2, v0')
            A('v_add_u32 v1, s42, v1')
            A('global_store_dword v1, v10, s[26:27]')
        self.lab('L_end')
        A('s_endpgm')

    def build(self):
        self.header()
        self.prologue()
        self.main()
        self.A('s_branch L_fin')
        self.loader()
        self.epilogue()
        self.footer()
        return '\n'.join(self.L) + '\n'


if __name__ == '__main__':
    import argparse
    ap = argparse.ArgumentParser()
    ap.add_argument('-o', default='cdna_kernels/' + KN + '.s')
    ap.add_argument('--stamps', action='store_true')
    ap.add_argument('--dbg', action='store_true')
    ap.add_argument('--depth', type=int, default=32)
    ap.add_argument('--rotmul', type=int, default=20)
    a = ap.parse_args()
    g = Gen(stamps=a.stamps or a.dbg, depth=a.depth, rotmul=a.rotmul, dbg=a.dbg)
    open(a.o, 'w').write(g.build())
    print('wrote', a.o)
```

```python
import sys

KN = 'gated_mix__sliding_block_cached__dense_activation_silu__decode'

L_K = 0
L_V = 65536
L_WQ = L_V + 49152
L_W1 = L_V + 40960
L_WO = 131072
L_W2 = 147456
L_X = 155648
L_G = 157696
L_QST = 158720
L_HST = 159744
L_F = 160768
F_PROG = L_F
F_QRDY = L_F + 256
F_PRDY = L_F + 272
F_CONS = L_F + 288
F_OUT = L_F + 292
F_MX = L_F + 320
LDS_BYTES = 163840

W_EPOCH = 0
W_Q = 0x10000
W_O = 0x50000
W_ML = 0xD0000
W_H = 0xE0000
W_OUT = 0x120000
W_B = 0x200000
W_STAMP = 0x10000000

P_X = 1
P_WQ = 5
P_W1 = 7
P_K = 23
P_W2 = 25
P_V0 = 25
P_WO0 = 41
NGROUPS = 45

SPIN_LIMIT = 1 << 18
SCALE_C = 0x3e0293ee
LOG2E = 0x3fb8aa3b


class Gen:
    def __init__(self, stamps=False, depth=32, rotmul=20, na_rounds=2, dbg=False, maxt=0):
        self.dbg = dbg
        self.maxt = maxt
        self.L = []
        self.stamps = stamps
        self.depth = depth
        self.rotmul = rotmul
        self.na = na_rounds
        self.uid = 0
        self.nstamp = 0
        self.stampnames = {}

    def A(self, s):
        self.L.append('  ' + s)

    def lab(self, s):
        self.L.append(s + ':')

    def newlab(self, p):
        self.uid += 1
        return f'L_{p}_{self.uid}'

    def stamp(self, idx, name=None):
        if not self.stamps:
            return
        self.A('s_memrealtime s[98:99]')
        self.A('s_waitcnt lgkmcnt(0)')
        self.A(f'v_writelane_b32 v10, s98, {idx}')

    def wait_prog(self, thr):
        l = self.newlab('wp')
        d = self.newlab('wpd')
        self.A(f's_cmp_ge_u32 s39, {thr}')
        self.A(f's_cbranch_scc1 {d}')
        self.A(f's_mov_b32 s63, {SPIN_LIMIT}')
        self.lab(l)
        self.A('ds_read_b32 v9, v15')
        self.A('s_sub_u32 s63, s63, 1')
        self.A(f's_cbranch_scc1 {d}')
        self.A('s_waitcnt lgkmcnt(0)')
        self.A('v_readfirstlane_b32 s39, v9')
        self.A(f's_cmp_ge_u32 s39, {thr}')
        self.A(f's_cbranch_scc0 {l}')
        self.lab(d)

    def spin_begin(self, name):
        l = self.newlab(name)
        d = self.newlab(name + 'd')
        self.A(f's_mov_b32 s63, {SPIN_LIMIT}')
        self.lab(l)
        self.A('s_sub_u32 s63, s63, 1')
        self.A(f's_cbranch_scc1 {d}')
        return l, d

    def sum_rows(self, v, t, op='v_add_f32'):
        A = self.A
        A(f'v_mov_b32 v{t}, v{v}')
        A('s_nop 1')
        A(f'v_permlane16_swap_b32 v{v}, v{t}')
        A('s_nop 1')
        A(f'{op} v{v}, v{v}, v{t}')
        A(f'v_mov_b32 v{t}, v{v}')
        A('s_nop 1')
        A(f'v_permlane32_swap_b32 v{v}, v{t}')
        A('s_nop 1')
        A(f'{op} v{v}, v{v}, v{t}')

    def sum_rows_multi(self, vs, ts, op='v_add_f32'):
        A = self.A
        for swap in ('v_permlane16_swap_b32', 'v_permlane32_swap_b32'):
            for v, t in zip(vs, ts):
                A(f'v_mov_b32 v{t}, v{v}')
            A('s_nop 1')
            for v, t in zip(vs, ts):
                A(f'{swap} v{v}, v{t}')
            A('s_nop 1')
            for v, t in zip(vs, ts):
                A(f'{op} v{v}, v{v}, v{t}')

    def header(self):
        L = self.L
        L.append(f'; @launch grid=(256,1,1) block=(320,1,1) lds={LDS_BYTES}')
        L.append('.amdgcn_target "amdgcn-amd-amdhsa--gfx950"')
        L.append('.text')
        L.append(f'.globl {KN}_kernel')
        L.append('.p2align 8')
        L.append(f'.type {KN}_kernel,@function')
        L.append(f'{KN}_kernel:')

    def footer(self):
        L = self.L
        L.append('.section .rodata,"a"')
        L.append('.p2align 6')
        L.append(f'.amdhsa_kernel {KN}_kernel')
        L.append('  .amdhsa_next_free_vgpr 256')
        L.append('  .amdhsa_next_free_sgpr 102')
        L.append('  .amdhsa_accum_offset 256')
        L.append('  .amdhsa_group_segment_fixed_size 0')
        L.append('  .amdhsa_kernarg_size 96')
        L.append('  .amdhsa_user_sgpr_count 2')
        L.append('  .amdhsa_user_sgpr_kernarg_segment_ptr 1')
        L.append('  .amdhsa_system_sgpr_workgroup_id_x 1')
        L.append('.end_amdhsa_kernel')

    def prologue(self):
        A = self.A
        if self.stamps or self.maxt:
            A('s_memrealtime s[96:97]')
        A('s_cmp_ge_u32 s2, 256')
        A('s_cbranch_scc1 L_end')
        A('s_load_dwordx16 s[4:19], s[0:1], 0')
        A('s_load_dwordx8 s[20:27], s[0:1], 64')
        A('v_lshrrev_b32 v1, 6, v0')
        A('v_and_b32 v0, 63, v0')
        A('s_and_b32 s29, s2, 7')
        A('v_readfirstlane_b32 s28, v1')
        A('s_lshr_b32 s30, s2, 3')
        A('s_lshr_b32 s31, s30, 4')
        A('s_and_b32 s32, s30, 15')
        A('s_lshr_b32 s33, s30, 3')
        A('s_and_b32 s34, s30, 7')
        A('s_lshr_b32 s40, s29, 1')
        A('s_mul_i32 s40, s40, 7')
        A('s_and_b32 s41, s29, 1')
        A('s_lshl_b32 s42, s41, 2')
        A('s_add_u32 s40, s40, s42')
        A('s_sub_u32 s41, 4, s41')
        if self.stamps:
            A('v_mov_b32 v10, 0')
        A('s_cmp_eq_u32 s28, 4')
        A('s_cbranch_scc1 L_loader')

    def loader(self):
        A = self.A
        self.lab('L_loader')
        A('v_lshrrev_b32 v4, 4, v0')
        A('v_and_b32 v5, 15, v0')
        for q in range(4):
            A(f'v_add_u32 v6, {4*q}, v4')
            A('v_xor_b32 v6, v6, v5')
            A('v_lshlrev_b32 v6, 4, v6')
            A(f'v_lshl_add_u32 v{20+q}, v4, 8, v6')
        for q in range(2):
            A(f'v_add_u32 v6, {4*q}, v4')
            A('v_lshlrev_b32 v6, 1, v6')
            A('v_xor_b32 v6, v6, v5')
            A('v_lshlrev_b32 v6, 4, v6')
            A(f'v_lshl_add_u32 v{24+q}, v4, 8, v6')
        A('v_lshrrev_b32 v4, 3, v0')
        A('v_and_b32 v5, 7, v0')
        A('v_and_b32 v6, 2, v4')
        A('v_xor_b32 v5, v5, v6')
        A('v_lshlrev_b32 v5, 4, v5')
        A('v_xor_b32 v6, 64, v5')
        A('v_lshl_add_u32 v26, v4, 13, v5')
        A('v_lshl_add_u32 v27, v4, 13, v6')
        A('v_lshl_add_u32 v28, v4, 10, v5')
        A('v_lshl_add_u32 v29, v4, 10, v6')
        A('v_mul_u32_u24 v7, 3584, v4')
        A('v_add_u32 v30, v7, v5')
        A('v_add_u32 v31, v7, v6')
        A('v_lshlrev_b32 v3, 4, v0')
        A('v_lshlrev_b32 v15, 2, v0')
        A(f'v_add_u32 v15, {F_PROG}, v15')
        A('s_lshl_b32 s43, s31, 3')
        A('s_add_u32 s43, s43, s29')
        A('s_lshl_b32 s43, s43, 23')
        A('s_lshl_b32 s44, s32, 16')
        A('s_add_u32 s43, s43, s44')
        A('s_add_u32 s43, s43, 0x700000')
        A('s_lshl_b32 s44, s33, 20')
        A('s_lshl_b32 s45, s29, 10')
        A('s_add_u32 s44, s44, s45')
        A('s_lshl_b32 s45, s34, 7')
        A('s_add_u32 s44, s44, s45')
        A('s_lshl_b32 s46, s29, 2')
        A('s_add_u32 s46, s46, s33')
        A('s_lshl_b32 s46, s46, 17')
        A('s_add_u32 s46, s46, s45')
        A('s_add_u32 s47, s40, s33')
        A('s_lshl_b32 s47, s47, 16')
        A('s_add_u32 s47, s47, s45')
        A('s_cmp_lt_u32 s33, s41')
        A(f's_cselect_b32 s78, {63*1024+128}, 0')
        A('s_cselect_b32 s47, s47, 0')
        A('s_and_b32 s48, s30, 3')
        A('s_lshr_b32 s49, s30, 2')
        A(f's_mul_i32 s49, s49, {64*3584}')
        A('s_cmp_lt_u32 s48, s41')
        A(f's_cselect_b32 s82, {63*3584+128}, 0')
        A('s_cselect_b32 s50, 1, 0')
        A('s_add_u32 s48, s48, s40')
        A('s_lshl_b32 s48, s48, 7')
        A('s_add_u32 s48, s48, s49')
        A('s_mul_i32 s48, s48, s50')
        A(f's_mul_i32 s51, s2, {self.rotmul}')
        A('s_and_b32 s51, s51, 60')
        A('s_lshl_b32 s51, s51, 10')
        A('s_waitcnt lgkmcnt(0)')

        def srd(n, lo, off, size):
            if off is None:
                A(f's_mov_b32 s{n}, s{lo}')
                A(f's_mov_b32 s{n+1}, s{lo+1}')
            else:
                A(f's_add_u32 s{n}, s{lo}, {off}')
                A(f's_addc_u32 s{n+1}, s{lo+1}, 0')
            if size is not None:
                A(f's_mov_b32 s{n+2}, {size}')
            A(f's_mov_b32 s{n+3}, 0x20000')

        groups = []
        nt = ' nt'

        def g_kv(srdn, ldsbase, vbase, nvar, pre_first=None):
            for gi in range(16):
                pre = []
                if gi == 0 and pre_first:
                    pre += pre_first
                pre += [f's_add_u32 s52, s51, {gi*4096}', 's_and_b32 s52, s52, 0xffff',
                        f's_mov_b32 m0, {ldsbase + gi*4096}', 's_nop 0']
                body = [f'buffer_load_dwordx4 v{vbase + (i % nvar)}, s[{srdn}:{srdn+3}], s52 offen offset:{i*1024}{nt} lds'
                        for i in range(4)]
                groups.append([pre, body, None])

        def g_rows(srdn, ldsbase, v, npieces, stride):
            for g0 in range(0, npieces, 4):
                body = []
                for p in range(g0, g0 + 4):
                    body.append(f's_mov_b32 m0, {ldsbase + p*1024}')
                    body.append(f's_mov_b32 s52, {p*8*stride}')
                    body.append(f'buffer_load_dwordx4 v{v + (p & 1)}, s[{srdn}:{srdn+3}], s52 offen{nt} lds')
                groups.append([[], body, None])

        groups.append([[f's_mov_b32 m0, {L_X}', 's_nop 0'],
                       ['buffer_load_dwordx4 v3, s[84:87], 0 offen lds',
                        'buffer_load_dwordx4 v3, s[84:87], 0 offen offset:1024 lds',
                        f's_mov_b32 m0, {L_G}', 's_nop 0',
                        'buffer_load_dwordx4 v3, s[88:91], 0 offen lds'], None])
        g_rows(68, L_WQ, 26, 16, 8192)
        g_rows(80, L_W1, 30, 8, 3584)
        g_kv(60, L_K, 20, 4)
        g_rows(76, L_W2, 28, 8, 1024)
        g_kv(64, L_V, 24, 2)
        g_rows(72, L_WO, 28, 16, 1024)
        assert len(groups) == NGROUPS
        cons_at = 25 + 10
        cnt = lambda g: sum(1 for x in g[1] if x.startswith('buffer_load'))
        ends = []
        tot = 0
        for g in groups:
            tot += cnt(g)
            ends.append(tot)

        setup = {
            0: lambda: (srd(84, 4, None, 2048), srd(88, 20, None, 1024)),
            1: lambda: srd(68, 10, 's44', 127 * 8192 + 128),
            5: lambda: srd(80, 16, 's48', None),
            7: lambda: srd(60, 6, 's43', 65536),
            23: lambda: srd(76, 18, 's47', None),
            25: lambda: srd(64, 8, 's43', 65536),
            41: lambda: srd(72, 12, 's46', 127 * 1024 + 128),
        }
        issued = 0
        landed = 0
        barrier_done = False

        def publish(n_landed):
            nonlocal landed
            k = landed
            while k < NGROUPS and ends[k] <= n_landed:
                k += 1
            if k > landed:
                landed = k
                A(f'v_mov_b32 v8, {k}')
                A('ds_write_b32 v15, v8')
                if self.stamps and k in (1, 5, 7, 23, 25, 33, 41, 45):
                    self.stamp({1: 2, 5: 3, 7: 4, 23: 5, 25: 6, 33: 7, 41: 8, 45: 9}[k])

        self.stamp(1)
        for gi, g in enumerate(groups):
            c = cnt(g)
            if issued + c > self.depth:
                if not barrier_done:
                    A('s_barrier')
                    barrier_done = True
                w = self.depth - c
                A(f's_waitcnt vmcnt({w})')
                publish(issued - w)
            if gi in setup:
                setup[gi]()
            if gi == cons_at:
                A(f'v_mov_b32 v7, {F_CONS}')
                l, d = self.spin_begin('cons')
                A('ds_read_b32 v9, v7')
                A('s_waitcnt lgkmcnt(0)')
                A('v_readfirstlane_b32 s53, v9')
                A('s_cmp_ge_u32 s53, 4')
                A(f's_cbranch_scc0 {l}')
                self.lab(d)
            for x in g[0]:
                A(x)
            for x in g[1]:
                A(x)
            issued += c
        A('v_lshrrev_b32 v4, 1, v0')
        A('v_lshlrev_b32 v4, 10, v4')
        A('v_and_b32 v5, 1, v0')
        A('v_lshl_add_u32 v4, v5, 4, v4')
        A('s_lshl_b32 s54, s29, 15')
        A('s_lshl_b32 s55, s31, 9')
        A('s_add_u32 s54, s54, s55')
        A('s_lshl_b32 s55, s32, 5')
        A('s_add_u32 s54, s54, s55')
        A(f's_add_u32 s54, s54, {W_OUT}')
        A('v_add_u32 v4, s54, v4')
        A('s_lshl_b32 s54, s31, 10')
        A('s_lshl_b32 s55, s29, 7')
        A('s_add_u32 s54, s54, s55')
        A('s_lshl_b32 s55, s32, 3')
        A('s_add_u32 s54, s54, s55')
        A('v_lshlrev_b32 v5, 2, v5')
        A('v_add_u32 v5, s54, v5')
        A(f's_load_dword s35, s[26:27], {W_EPOCH}')
        w = min(self.depth, issued)
        while w > 0:
            w = max(0, w - 4)
            A(f's_waitcnt vmcnt({w})')
            publish(issued - w)
        assert landed == NGROUPS
        A('s_waitcnt lgkmcnt(0)')
        A('s_add_u32 s35, s35, 1')
        A(f'v_mov_b32 v7, {F_OUT}')
        l, d = self.spin_begin('outw')
        A('ds_read_b32 v9, v7')
        A('s_waitcnt lgkmcnt(0)')
        A('v_readfirstlane_b32 s53, v9')
        A('s_cmp_ge_u32 s53, 4')
        A(f's_cbranch_scc0 {l}')
        self.lab(d)
        self.stamp(11)
        A(f's_mov_b32 s53, {SPIN_LIMIT}')
        l = self.newlab('fin')
        d = self.newlab('find')
        self.lab(l)
        A('global_load_dwordx4 v[16:19], v4, s[26:27] sc1')
        A('s_waitcnt vmcnt(0)')
        A('v_cmp_ne_u32 vcc, s35, v17')
        A('v_cmp_ne_u32 s[56:57], s35, v19')
        A('s_or_b64 vcc, vcc, s[56:57]')
        A(f's_cbranch_vccz {d}')
        A('s_sub_u32 s53, s53, 1')
        A(f's_cbranch_scc0 {l}')
        self.lab(d)
        self.stamp(12)
        for v in (16, 18):
            A(f'v_add_f32_dpp v{v}, v{v}, v{v} quad_perm:[2,3,0,1] row_mask:0xf bank_mask:0xf')
        A('s_nop 0')
        for v in (16, 18):
            A(f'v_add_f32_dpp v{v}, v{v}, v{v} row_ror:4 row_mask:0xf bank_mask:0xf')
        A('s_nop 0')
        for v in (16, 18):
            A(f'v_add_f32_dpp v{v}, v{v}, v{v} row_ror:8 row_mask:0xf bank_mask:0xf')
        self.sum_rows_multi([16, 18], [20, 21])
        A('v_cvt_pk_bf16_f32 v16, v16, v18')
        if self.maxt:
            A('s_memrealtime s[98:99]')
            A('s_waitcnt lgkmcnt(0)')
            A('s_sub_u32 s98, s98, s96')
            A(f's_cmp_gt_u32 s98, {self.maxt}')
            A('s_cbranch_scc0 L_tok')
            A('v_mov_b32 v16, 0x7fc07fc0')
            self.lab('L_tok')
        A('v_cmp_gt_u32 vcc, 2, v0')
        A('s_and_saveexec_b64 s[56:57], vcc')
        A('global_store_dword v5, v16, s[22:23]')
        A('s_mov_b64 exec, s[56:57]')
        A('s_cmp_lg_u32 s2, 0')
        A('s_cbranch_scc1 L_fin')
        A('v_mov_b32 v6, 0')
        A('v_mov_b32 v7, s35')
        A('v_cmp_eq_u32 vcc, 0, v0')
        A('s_and_saveexec_b64 s[56:57], vcc')
        A(f'global_store_dword v6, v7, s[26:27] offset:{W_EPOCH} sc1')
        A('s_mov_b64 exec, s[56:57]')
        A('s_branch L_fin')

    def main(self):
        A = self.A
        A('v_lshrrev_b32 v11, 4, v0')
        A('v_and_b32 v12, 15, v0')
        A('v_bfe_u32 v13, v0, 2, 2')
        A('v_and_b32 v14, 3, v0')
        A(f'v_mov_b32 v15, {F_PROG}')
        A('s_mov_b32 s39, 0')
        A('s_getreg_b32 s36, hwreg(HW_REG_XCC_ID, 0, 4)')
        A('s_lshr_b32 s58, s28, 1')
        A('s_and_b32 s59, s28, 1')
        A('s_cmp_lg_u32 s28, 0')
        A('s_cbranch_scc1 L_noinit')
        A('v_mov_b32 v1, 0')
        A('v_lshlrev_b32 v2, 2, v0')
        A(f'v_add_u32 v3, {F_PROG}, v2')
        A('ds_write_b32 v3, v1')
        A('v_cmp_gt_u32 vcc, 16, v0')
        A('s_and_saveexec_b64 s[56:57], vcc')
        A(f'ds_write_b32 v3, v1 offset:256')
        A('v_mov_b32 v1, -1')
        A(f'ds_write_b32 v3, v1 offset:320')
        A('s_mov_b64 exec, s[56:57]')
        self.lab('L_noinit')
        A('s_lshl_b32 s42, s29, 15')
        A('s_lshl_b32 s43, s30, 10')
        A('s_add_u32 s42, s42, s43')
        A(f's_add_u32 s60, s42, {W_O}')
        A('s_lshl_b32 s43, s28, 8')
        A('s_add_u32 s43, s43, s60')
        A('v_lshlrev_b32 v1, 4, v0')
        A('v_add_u32 v1, s43, v1')
        A('s_lshl_b32 s42, s29, 14')
        A('s_and_b32 s43, s30, 3')
        A('s_lshl_b32 s43, s43, 12')
        A('s_add_u32 s42, s42, s43')
        A('s_lshr_b32 s43, s30, 2')
        A('s_lshl_b32 s43, s43, 9')
        A('s_add_u32 s42, s42, s43')
        A(f's_add_u32 s61, s42, {W_H}')
        A('s_lshl_b32 s43, s28, 6')
        A('s_add_u32 s43, s43, s61')
        A('v_bfe_u32 v2, v0, 2, 1')
        A('v_lshlrev_b32 v2, 8, v2')
        A('v_lshl_add_u32 v2, v14, 4, v2')
        A('v_add_u32 v2, s43, v2')
        A('v_cmp_gt_u32 vcc, 16, v0')
        A('s_nop 1')
        A('v_cndmask_b32 v1, v2, v1, vcc')
        A('s_lshl_b32 s42, s29, 10')
        A('s_lshl_b32 s43, s28, 8')
        A('s_add_u32 s42, s42, s43')
        A('s_lshl_b32 s43, s30, 3')
        A('s_add_u32 s42, s42, s43')
        A(f's_add_u32 s62, s42, {W_ML}')
        A('v_mov_b32 v3, s62')
        A('v_mov_b32 v4, -1')
        A('v_mov_b32 v5, -1')
        A('v_mov_b32 v6, -1')
        A('v_mov_b32 v7, -1')
        A(f'v_add_u32 v2, {W_B}, v1')
        A(f'v_add_u32 v8, {W_B}, v3')
        A('s_waitcnt lgkmcnt(0)')
        A(f's_load_dword s35, s[26:27], {W_EPOCH}')
        A('v_cmp_gt_u32 vcc, 24, v0')
        A('s_and_saveexec_b64 s[56:57], vcc')
        A('global_store_dwordx4 v1, v[4:7], s[26:27]')
        A('global_store_dwordx4 v2, v[4:7], s[26:27] sc1')
        A('s_mov_b64 exec, 1')
        A('global_store_dwordx2 v3, v[4:5], s[26:27]')
        A('global_store_dwordx2 v8, v[4:5], s[26:27] sc1')
        A('s_mov_b64 exec, s[56:57]')
        A('v_lshl_add_u32 v1, v11, 3, v13')
        A('v_lshlrev_b32 v1, 7, v1')
        A('v_lshl_add_u32 v1, v14, 3, v1')
        A('v_lshrrev_b32 v2, 1, v13')
        A('v_and_b32 v3, 1, v11')
        A('v_lshl_or_b32 v2, v3, 1, v2')
        A('v_xor_b32 v3, s28, v2')
        A('v_lshl_add_u32 v3, v3, 5, v1')
        A(f'v_add_u32 v16, {L_WQ}, v3')
        A(f'v_add_u32 v17, {L_W1}, v3')
        A('s_lshl_b32 s42, s59, 1')
        A('v_xor_b32 v3, s42, v2')
        A('v_lshl_add_u32 v3, v3, 5, v1')
        A(f'v_add_u32 v18, {L_WO}, v3')
        A('v_xor_b32 v19, 32, v18')
        A('v_and_b32 v1, 1, v12')
        A('v_lshlrev_b32 v1, 10, v1')
        A('v_lshl_add_u32 v1, v11, 4, v1')
        A(f'v_add_u32 v1, {L_X}, v1')
        A('s_lshl_b32 s42, s33, 8')
        A('v_add_u32 v20, s42, v1')
        A('s_lshr_b32 s42, s30, 2')
        A('s_lshl_b32 s42, s42, 7')
        A('v_add_u32 v21, s42, v1')
        A('v_xor_b32 v1, v11, v12')
        A('s_lshl_b32 s42, s28, 14')
        A('v_lshlrev_b32 v2, 8, v12')
        A('v_add_u32 v2, s42, v2')
        for k in range(4):
            A(f'v_xor_b32 v3, {4*k}, v1')
            A(f'v_lshl_add_u32 v{22+k}, v3, 4, v2')
        A('v_lshl_add_u32 v1, v11, 2, v13')
        A('v_and_b32 v2, 7, v1')
        A('v_lshlrev_b32 v1, 8, v1')
        A('v_lshl_add_u32 v1, v14, 3, v1')
        A(f'v_add_u32 v1, {L_V}, v1')
        A('s_lshl_b32 s42, s28, 1')
        A('v_xor_b32 v2, s42, v2')
        A('v_lshl_add_u32 v26, v2, 5, v1')
        A('v_xor_b32 v27, 32, v26')
        A('s_barrier')
        self.stamp(1)

        self.wait_prog(P_X)
        A('v_lshlrev_b32 v1, 4, v0')
        A('s_lshl_b32 s42, s58, 10')
        A('v_add_u32 v2, s42, v1')
        A(f'v_add_u32 v2, {L_X}, v2')
        A(f'v_add_u32 v1, {L_G}, v1')
        A('ds_read_b128 v[32:35], v2')
        A('ds_read_b128 v[36:39], v1')
        for k in range(4):
            A(f'ds_read_b128 v[{40+4*k}:{43+4*k}], v20 offset:{64*k}')
        for k in range(2):
            A(f'ds_read_b128 v[{56+4*k}:{59+4*k}], v21 offset:{64*k}')
        A('v_mov_b32 v28, 0')
        A('s_waitcnt lgkmcnt(6)')
        for k in range(4):
            A(f'v_dot2c_f32_bf16 v28, v{32+k}, v{36+k}')
        A('s_nop 2')
        A('v_add_f32_dpp v28, v28, v28 quad_perm:[1,0,3,2] row_mask:0xf bank_mask:0xf')
        A('s_nop 1')
        A('v_add_f32_dpp v28, v28, v28 quad_perm:[2,3,0,1] row_mask:0xf bank_mask:0xf')
        A('s_nop 1')
        A('v_add_f32_dpp v28, v28, v28 row_ror:4 row_mask:0xf bank_mask:0xf')
        A('s_nop 1')
        A('v_add_f32_dpp v28, v28, v28 row_ror:8 row_mask:0xf bank_mask:0xf')
        self.sum_rows(28, 1)
        A(f's_mov_b32 s42, {LOG2E}')
        A('v_mul_f32 v28, s42, v28')
        A('v_sub_f32 v28, 0, v28')
        A('v_exp_f32 v28, v28')
        A('s_nop 0')
        A('v_add_f32 v28, 1.0, v28')
        A('v_rcp_f32 v28, v28')
        A('s_nop 0')
        A('v_sub_f32 v29, 1.0, v28')
        self.stamp(2)

        self.wait_prog(P_WQ)
        for k in range(4):
            for eta in range(2):
                A(f'ds_read_b64_tr_b16 v[{64+4*k+2*eta}:{65+4*k+2*eta}], v16 offset:{k*4096+eta*512}')
        for k in range(4):
            A(f's_waitcnt lgkmcnt({6-2*k})')
            c = '0' if k == 0 else 'v[80:83]'
            A(f'v_mfma_f32_16x16x32_bf16 v[80:83], v[{64+4*k}:{67+4*k}], v[{40+4*k}:{43+4*k}], {c}')
        A('s_lshl_b32 s42, s29, 14')
        A('s_lshl_b32 s43, s33, 11')
        A('s_add_u32 s42, s42, s43')
        A('s_lshl_b32 s43, s34, 8')
        A('s_add_u32 s42, s42, s43')
        A('s_lshl_b32 s43, s28, 6')
        A('s_add_u32 s42, s42, s43')
        A(f's_add_u32 s42, s42, {W_Q}')
        A('v_lshlrev_b32 v1, 13, v12')
        A('v_lshl_add_u32 v1, v11, 4, v1')
        A('v_add_u32 v1, s42, v1')
        A(f'v_add_u32 v2, {W_B}, v1')
        A('s_waitcnt lgkmcnt(0)')
        A('s_add_u32 s35, s35, 1')
        A('s_lshl_b32 s43, s36, 24')
        A('s_xor_b32 s43, s43, s35')
        A('s_nop 3')
        A('v_cvt_pk_bf16_f32 v4, v80, v81')
        A('v_mov_b32 v5, s35')
        A('v_cvt_pk_bf16_f32 v6, v82, v83')
        A('v_mov_b32 v7, s43')
        A('s_waitcnt vmcnt(0)')
        A('v_cmp_gt_u32 vcc, 2, v12')
        A('s_and_saveexec_b64 s[56:57], vcc')
        A('global_store_dwordx4 v1, v[4:7], s[26:27]')
        A('global_store_dwordx4 v2, v[4:7], s[26:27] sc1')
        A('s_mov_b64 exec, s[56:57]')
        self.stamp(3)

        self.wait_prog(P_W1)
        for k in range(2):
            for eta in range(2):
                A(f'ds_read_b64_tr_b16 v[{64+4*k+2*eta}:{65+4*k+2*eta}], v17 offset:{k*4096+eta*512}')
        for k in range(2):
            A(f's_waitcnt lgkmcnt({2-2*k})')
            c = '0' if k == 0 else 'v[80:83]'
            A(f'v_mfma_f32_16x16x32_bf16 v[80:83], v[{64+4*k}:{67+4*k}], v[{56+4*k}:{59+4*k}], {c}')
        A(f'v_mov_b32 v1, {F_CONS}')
        A('v_mov_b32 v2, 1')
        A('s_mov_b64 s[56:57], exec')
        A('s_mov_b64 exec, 1')
        A('ds_add_u32 v1, v2')
        A('s_mov_b64 exec, s[56:57]')
        A('s_lshl_b32 s42, s28, 6')
        A('s_add_u32 s42, s42, s61')
        A('v_lshlrev_b32 v1, 8, v12')
        A('v_lshl_add_u32 v1, v11, 4, v1')
        A('v_add_u32 v1, s42, v1')
        A(f'v_add_u32 v2, {W_B}, v1')
        A('s_and_b32 s42, s30, 3')
        A('s_cmp_lt_u32 s42, s41')
        A('s_cbranch_scc0 L_nohpub')
        A('v_cmp_gt_u32 vcc, 2, v12')
        A('s_and_saveexec_b64 s[56:57], vcc')
        A('global_store_dwordx4 v1, v[80:83], s[26:27]')
        A('global_store_dwordx4 v2, v[80:83], s[26:27] sc1')
        A('s_mov_b64 exec, s[56:57]')
        self.lab('L_nohpub')
        self.stamp(4)

        A('s_lshl_b32 s42, s29, 14')
        A('s_lshl_b32 s43, s31, 13')
        A('s_add_u32 s42, s42, s43')
        A('s_lshl_b32 s43, s28, 9')
        A('s_add_u32 s42, s42, s43')
        A(f's_add_u32 s42, s42, {W_Q}')
        A('v_lshrrev_b32 v1, 5, v0')
        A('v_lshlrev_b32 v1, 11, v1')
        A('v_and_b32 v2, 31, v0')
        A('v_lshl_add_u32 v1, v2, 4, v1')
        A('v_add_u32 v30, s42, v1')
        A('s_mov_b32 s44, 0')
        lq = self.newlab('qpoll')
        dq = self.newlab('qdone')
        self.lab(lq)
        A(f's_cmp_lt_u32 s44, {self.na}')
        A('s_cselect_b32 s45, 0, s44')
        A('s_and_b32 s45, s45, 1')
        A(f's_mul_i32 s45, s45, {W_B}')
        A('v_add_u32 v1, s45, v30')
        A('v_add_u32 v2, 4096, v1')
        A('global_load_dwordx4 v[32:35], v1, s[26:27] sc1')
        A('global_load_dwordx4 v[36:39], v2, s[26:27] sc1')
        A('s_waitcnt vmcnt(0)')
        A('v_xor_b32 v33, s35, v33')
        A('v_xor_b32 v35, s35, v35')
        A('v_xor_b32 v37, s35, v37')
        A('v_xor_b32 v39, s35, v39')
        A('v_or_b32 v3, v35, v39')
        A('v_and_b32 v3, 0xf0ffffff, v3')
        A('v_or3_b32 v3, v3, v33, v37')
        A('v_cmp_ne_u32 vcc, 0, v3')
        A(f's_cbranch_vccz {dq}')
        A('s_add_u32 s44, s44, 1')
        A(f's_cmp_lt_u32 s44, {SPIN_LIMIT}')
        A(f's_cbranch_scc1 {lq}')
        self.lab(dq)
        A('s_lshl_b32 s43, s36, 24')
        A('v_cmp_ne_u32 vcc, s43, v35')
        A('v_cmp_ne_u32 s[56:57], s43, v39')
        A('s_or_b64 vcc, vcc, s[56:57]')
        A('s_cmp_eq_u64 vcc, 0')
        A('s_cselect_b32 s45, 3, 1')
        for src in (32, 36):
            for d in range(2):
                A(f'v_lshlrev_b32 v{40 + (src-32) + 2*d}, 16, v{src + 2*d}')
                A(f'v_and_b32 v{41 + (src-32) + 2*d}, 0xffff0000, v{src + 2*d}')
        for k in range(4):
            A(f'v_add_f32 v{40+k}, v{40+k}, v{44+k}')
        for k in range(4):
            A(f'v_mov_b32 v{44+k}, v{40+k}')
        A('s_nop 1')
        for k in range(4):
            A(f'v_permlane32_swap_b32 v{40+k}, v{44+k}')
        A('s_nop 1')
        for k in range(4):
            A(f'v_add_f32 v{40+k}, v{40+k}, v{44+k}')
        A('v_cvt_pk_bf16_f32 v4, v40, v41')
        A('v_cvt_pk_bf16_f32 v5, v42, v43')
        A('v_and_b32 v2, 31, v0')
        A('v_lshlrev_b32 v2, 3, v2')
        A('s_lshl_b32 s42, s28, 8')
        A(f's_add_u32 s42, s42, {L_QST}')
        A('v_add_u32 v2, s42, v2')
        A('ds_write_b64 v2, v[4:5]')
        A('s_lshl_b32 s42, s28, 2')
        A(f's_add_u32 s42, s42, {F_QRDY}')
        A('v_mov_b32 v1, s42')
        A('v_mov_b32 v2, s45')
        A('s_waitcnt lgkmcnt(0)')
        A('s_mov_b64 s[56:57], exec')
        A('s_mov_b64 exec, 1')
        A('ds_write_b32 v1, v2')
        A('s_mov_b64 exec, s[56:57]')
        self.stamp(5)
        A(f'v_mov_b32 v1, {F_QRDY}')
        A('s_mov_b32 s45, 1')
        l, d = self.spin_begin('qrdy')
        A('ds_read_b128 v[4:7], v1')
        A('s_waitcnt lgkmcnt(0)')
        A('v_and_b32 v4, v4, v5')
        A('v_and_b32 v6, v6, v7')
        A('v_and_b32 v4, v4, v6')
        A('s_nop 0')
        A('v_readfirstlane_b32 s45, v4')
        A('s_bitcmp1_b32 s45, 0')
        A(f's_cbranch_scc0 {l}')
        self.lab(d)
        A('s_bitcmp1_b32 s45, 1')
        A(f's_cselect_b32 s37, 0, {W_B}')
        A('s_lshl_b32 s42, s29, 14')
        A('s_lshl_b32 s43, s33, 12')
        A('s_add_u32 s42, s42, s43')
        A(f's_add_u32 s42, s42, {W_H}')
        A('s_add_u32 s42, s42, s37')
        A('v_lshlrev_b32 v31, 4, v0')
        A('v_add_u32 v31, s42, v31')
        for k in range(4):
            A(f'global_load_dwordx4 v[{208+4*k}:{211+4*k}], v31, s[26:27] offset:{1024*k} sc1')
        A('v_lshlrev_b32 v1, 8, v14')
        A('v_lshl_add_u32 v1, v11, 4, v1')
        A(f'v_add_u32 v1, {L_QST}, v1')
        for k in range(4):
            A(f'ds_read_b128 v[{32+4*k}:{35+4*k}], v1 offset:{64*k}')
        self.stamp(6)

        self.wait_prog(P_K)
        A('s_waitcnt lgkmcnt(0)')
        for t in range(4):
            for k in range(4):
                A(f'ds_read_b128 v[{64+16*t+4*k}:{67+16*t+4*k}], v{22+k} offset:{t*4096}')
        for t in range(4):
            A(f's_waitcnt lgkmcnt({12-4*t})')
            for k in range(4):
                c = '0' if k == 0 else f'v[{48+4*t}:{51+4*t}]'
                A(f'v_mfma_f32_16x16x32_bf16 v[{48+4*t}:{51+4*t}], v[{64+16*t+4*k}:{67+16*t+4*k}], v[{32+4*k}:{35+4*k}], {c}')
        A('s_nop 7')
        A('v_max3_f32 v1, v48, v49, v50')
        A('v_max3_f32 v2, v51, v52, v53')
        A('v_max3_f32 v3, v54, v55, v56')
        A('v_max3_f32 v4, v57, v58, v59')
        A('v_max3_f32 v1, v1, v60, v61')
        A('v_max3_f32 v2, v2, v62, v63')
        A('v_max3_f32 v1, v1, v3, v4')
        A('v_max_f32 v1, v1, v2')
        self.sum_rows(1, 2, 'v_max_f32')
        A('s_lshl_b32 s42, s28, 2')
        A(f's_add_u32 s42, s42, {F_MX}')
        A('v_lshlrev_b32 v2, 4, v14')
        A('v_add_u32 v3, s42, v2')
        A(f'v_add_u32 v2, {F_MX}, v2')
        A('v_cmp_gt_u32 vcc, 4, v0')
        A('s_and_saveexec_b64 s[56:57], vcc')
        A('ds_write_b32 v3, v1')
        A('s_mov_b64 exec, s[56:57]')
        l, d = self.spin_begin('mx')
        A('ds_read_b128 v[4:7], v2')
        A('s_waitcnt lgkmcnt(0)')
        A('v_max_u32 v8, v4, v5')
        A('v_max3_u32 v8, v8, v6, v7')
        A('v_cmp_eq_u32 vcc, -1, v8')
        A(f's_cbranch_vccnz {l}')
        self.lab(d)
        A('v_max3_f32 v1, v4, v5, v6')
        A('v_max_f32 v1, v1, v7')
        A(f's_mov_b32 s42, {SCALE_C}')
        A('v_mul_f32 v30, s42, v1')
        for r in range(16):
            A(f'v_fma_f32 v{48+r}, v{48+r}, s42, -v30')
        for r in range(16):
            A(f'v_exp_f32 v{48+r}, v{48+r}')
        A('s_nop 0')
        for u in range(2):
            for q in range(4):
                A(f'v_cvt_pk_bf16_f32 v{64+4*u+q}, v{48+8*u+2*q}, v{49+8*u+2*q}')
        A('v_lshlrev_b32 v1, 4, v0')
        A('s_lshl_b32 s42, s28, 14')
        A('v_add_u32 v2, s42, v1')
        A('ds_write_b128 v2, v[64:67]')
        A('ds_write_b128 v2, v[68:71] offset:1024')
        A('s_lshl_b32 s42, s28, 2')
        A(f's_add_u32 s42, s42, {F_PRDY}')
        A('v_mov_b32 v3, s42')
        A('v_mov_b32 v4, 1')
        A('s_waitcnt lgkmcnt(0)')
        A('s_mov_b64 s[56:57], exec')
        A('s_mov_b64 exec, 1')
        A('ds_write_b32 v3, v4')
        A('s_mov_b64 exec, s[56:57]')
        self.stamp(7)
        A(f'v_mov_b32 v3, {F_PRDY}')
        l, d = self.spin_begin('prdy')
        A('ds_read_b128 v[4:7], v3')
        A('s_waitcnt lgkmcnt(0)')
        A('v_and_b32 v4, v4, v5')
        A('v_and_b32 v6, v6, v7')
        A('v_and_b32 v4, v4, v6')
        A('s_nop 0')
        A('v_readfirstlane_b32 s45, v4')
        A('s_cmp_eq_u32 s45, 1')
        A(f's_cbranch_scc0 {l}')
        self.lab(d)
        for U in range(8):
            A(f'ds_read_b128 v[{64+4*U}:{67+4*U}], v1 offset:{(U>>1)*16384 + (U&1)*1024}')
        for r in range(4):
            A(f'v_mov_b32 v{32+r}, 0x3f803f80')
            A(f'v_mov_b32 v{36+r}, 0')
            A(f'v_mov_b32 v{40+r}, 0')
            A(f'v_mov_b32 v{44+r}, 0')
        A('s_waitcnt lgkmcnt(0)')
        for U in range(8):
            A(f'v_mfma_f32_16x16x32_bf16 v[36:39], v[32:35], v[{64+4*U}:{67+4*U}], v[36:39]')
        self.stamp(8)

        for U in range(8):
            self.wait_prog(P_V0 + 2 * (U + 1))
            base = 96 + 8 * (U & 1)
            for ds in range(2):
                for eta in range(2):
                    A(f'ds_read_b64_tr_b16 v[{base+4*ds+2*eta}:{base+4*ds+2*eta+1}], v{26+ds} offset:{U*8192+eta*4096}')
            A('s_waitcnt lgkmcnt(2)')
            A(f'v_mfma_f32_16x16x32_bf16 v[40:43], v[{base}:{base+3}], v[{64+4*U}:{67+4*U}], v[40:43]')
            A('s_waitcnt lgkmcnt(0)')
            A(f'v_mfma_f32_16x16x32_bf16 v[44:47], v[{base+4}:{base+7}], v[{64+4*U}:{67+4*U}], v[44:47]')
        self.stamp(9)
        A('v_lshlrev_b32 v1, 8, v14')
        A('v_bfe_u32 v2, v0, 2, 1')
        A('v_lshl_add_u32 v1, v2, 5, v1')
        A('v_lshl_add_u32 v1, v11, 3, v1')
        A('s_lshl_b32 s42, s28, 6')
        A('s_add_u32 s42, s42, s60')
        A('s_add_u32 s42, s42, s37')
        A('v_add_u32 v1, s42, v1')
        A('v_cmp_eq_u32 vcc, 1, v2')
        A('s_add_u32 s43, s62, s37')
        A('v_mov_b32 v3, s43')
        A('s_nop 3')
        for r in range(4):
            A(f'v_cndmask_b32 v{4+r}, v{40+r}, v{44+r}, vcc')
        A('v_cvt_pk_bf16_f32 v4, v4, v5')
        A('v_cvt_pk_bf16_f32 v5, v6, v7')
        A('v_mov_b32 v6, v30')
        A('v_mov_b32 v7, v36')
        A('v_cmp_gt_u32 vcc, 8, v12')
        A('v_cmp_eq_u32 s[44:45], s28, v0')
        A('s_mov_b64 s[56:57], exec')
        A('s_cmp_eq_u32 s37, 0')
        A('s_cbranch_scc0 L_opub_far')
        A('s_mov_b64 exec, vcc')
        A('global_store_dwordx2 v1, v[4:5], s[26:27]')
        A('s_mov_b64 exec, s[44:45]')
        A('global_store_dwordx2 v3, v[6:7], s[26:27]')
        A('s_branch L_opub_done')
        self.lab('L_opub_far')
        A('s_mov_b64 exec, vcc')
        A('global_store_dwordx2 v1, v[4:5], s[26:27] sc1')
        A('s_mov_b64 exec, s[44:45]')
        A('global_store_dwordx2 v3, v[6:7], s[26:27] sc1')
        self.lab('L_opub_done')
        A('s_mov_b64 exec, s[56:57]')
        self.stamp(10)

        for r in range(4):
            A(f'v_mov_b32 v{48+r}, 0')
            A(f'v_mov_b32 v{52+r}, 0')
        A('s_cmp_lt_u32 s33, s41')
        A('s_cbranch_scc0 L_noffn')
        A(f's_mov_b32 s44, {SPIN_LIMIT}')
        l = self.newlab('hpoll')
        d = self.newlab('hdone')
        self.lab(l)
        A('s_waitcnt vmcnt(0)')
        A('v_max3_u32 v1, v208, v209, v210')
        for k in range(211, 223, 2):
            A(f'v_max3_u32 v1, v1, v{k}, v{k+1}')
        A('v_max_u32 v1, v1, v223')
        A('v_cmp_eq_u32 vcc, -1, v1')
        A(f's_cbranch_vccz {d}')
        for k in range(4):
            A(f'global_load_dwordx4 v[{208+4*k}:{211+4*k}], v31, s[26:27] offset:{1024*k} sc1')
        A('s_sub_u32 s44, s44, 1')
        A(f's_cbranch_scc0 {l}')
        self.lab(d)
        for q in range(4):
            A(f'v_add_f32 v{208+q}, v{208+q}, v{212+q}')
            A(f'v_add_f32 v{216+q}, v{216+q}, v{220+q}')
        for q in range(4):
            A(f'v_add_f32 v{208+q}, v{208+q}, v{216+q}')
            A(f'v_mov_b32 v{212+q}, v{208+q}')
        A('s_nop 1')
        for q in range(4):
            A(f'v_permlane32_swap_b32 v{208+q}, v{212+q}')
        A('s_nop 1')
        A(f's_mov_b32 s42, {LOG2E}')
        for q in range(4):
            A(f'v_add_f32 v{208+q}, v{208+q}, v{212+q}')
        for q in range(4):
            A(f'v_mul_f32 v{212+q}, s42, v{208+q}')
            A(f'v_sub_f32 v{212+q}, 0, v{212+q}')
        for q in range(4):
            A(f'v_exp_f32 v{212+q}, v{212+q}')
        A('s_nop 0')
        for q in range(4):
            A(f'v_add_f32 v{212+q}, 1.0, v{212+q}')
        for q in range(4):
            A(f'v_rcp_f32 v{212+q}, v{212+q}')
        A('s_nop 0')
        for q in range(4):
            A(f'v_mul_f32 v{208+q}, v{208+q}, v{212+q}')
        A('v_cvt_pk_bf16_f32 v4, v208, v209')
        A('v_cvt_pk_bf16_f32 v5, v210, v211')
        A('v_and_b32 v1, 31, v0')
        A('v_lshlrev_b32 v1, 3, v1')
        A('s_lshl_b32 s42, s28, 8')
        A(f's_add_u32 s42, s42, {L_HST}')
        A('v_add_u32 v1, s42, v1')
        A('ds_write_b64 v1, v[4:5]')
        A('v_and_b32 v1, 1, v12')
        A('v_lshlrev_b32 v1, 7, v1')
        A('v_lshl_add_u32 v1, v11, 4, v1')
        A('v_add_u32 v1, s42, v1')
        A('s_waitcnt lgkmcnt(0)')
        A('ds_read_b128 v[56:59], v1')
        A('ds_read_b128 v[60:63], v1 offset:64')
        self.wait_prog(P_W2)
        for t in range(2):
            for k in range(2):
                for eta in range(2):
                    rb = 96 + 8*t + 4*k + 2*eta
                    A(f'ds_read_b64_tr_b16 v[{rb}:{rb+1}], v{18+t} offset:{L_W2-L_WO + k*4096 + eta*512}')
        A('s_waitcnt lgkmcnt(0)')
        for k in range(2):
            for t in range(2):
                A(f'v_mfma_f32_16x16x32_bf16 v[{48+4*t}:{51+4*t}], v[{56+4*k}:{59+4*k}], v[{96+8*t+4*k}:{99+8*t+4*k}], v[{48+4*t}:{51+4*t}]')
        self.lab('L_noffn')
        self.stamp(11)

        A('s_lshl_b32 s42, s29, 15')
        A('s_lshl_b32 s43, s58, 14')
        A('s_add_u32 s42, s42, s43')
        A('s_lshl_b32 s43, s33, 8')
        A('s_add_u32 s42, s42, s43')
        A(f's_add_u32 s42, s42, {W_O}')
        A('s_add_u32 s42, s42, s37')
        A('v_lshlrev_b32 v1, 10, v12')
        A('v_lshl_add_u32 v1, v11, 4, v1')
        A('v_add_u32 v1, s42, v1')
        A('s_lshl_b32 s42, s29, 10')
        A('s_lshl_b32 s43, s33, 8')
        A('s_add_u32 s42, s42, s43')
        A('s_lshl_b32 s43, s58, 7')
        A('s_add_u32 s42, s42, s43')
        A(f's_add_u32 s42, s42, {W_ML}')
        A('s_add_u32 s42, s42, s37')
        A('v_lshlrev_b32 v2, 5, v11')
        A('v_add_u32 v2, s42, v2')
        A(f's_mov_b32 s44, {SPIN_LIMIT}')
        l = self.newlab('opoll')
        d = self.newlab('odone')
        self.lab(l)
        for k in range(4):
            A(f'global_load_dwordx4 v[{64+4*k}:{67+4*k}], v1, s[26:27] offset:{64*k} sc1')
        A('global_load_dwordx4 v[80:83], v2, s[26:27] sc1')
        A('global_load_dwordx4 v[84:87], v2, s[26:27] offset:16 sc1')
        A('s_waitcnt vmcnt(0)')
        A('v_max3_u32 v3, v64, v65, v66')
        for k in range(67, 87, 2):
            A(f'v_max3_u32 v3, v3, v{k}, v{k+1}')
        A('v_max_u32 v3, v3, v87')
        A('v_cmp_eq_u32 vcc, -1, v3')
        A(f's_cbranch_vccz {d}')
        A('s_sub_u32 s44, s44, 1')
        A(f's_cbranch_scc0 {l}')
        self.lab(d)
        self.stamp(12)
        A('v_max3_f32 v3, v80, v82, v84')
        A('v_max_f32 v3, v3, v86')
        self.sum_rows(3, 4, 'v_max_f32')
        for r in range(4):
            A(f'v_sub_f32 v{80+2*r}, v{80+2*r}, v3')
        for r in range(4):
            A(f'v_exp_f32 v{80+2*r}, v{80+2*r}')
        A('s_nop 0')
        A('v_mul_f32 v3, v80, v81')
        for r in range(1, 4):
            A(f'v_fmac_f32 v3, v{80+2*r}, v{81+2*r}')
        self.sum_rows(3, 4)
        A('v_rcp_f32 v3, v3')
        A('s_nop 0')
        A('v_mul_f32 v3, v3, v28')
        for r in range(4):
            A(f'v_mul_f32 v{80+2*r}, v{80+2*r}, v3')
        for k in range(4):
            self.wait_prog(P_WO0 + k + 1)
            for t in range(2):
                for eta in range(2):
                    rb = 96 + 8*(k & 1) + 4*t + 2*eta
                    A(f'ds_read_b64_tr_b16 v[{rb}:{rb+1}], v{18+t} offset:{k*4096 + eta*512}')
            rb = 96 + 8*(k & 1)
            A('s_waitcnt lgkmcnt(2)')
            c0 = '0' if k == 0 else 'v[88:91]'
            c1 = '0' if k == 0 else 'v[92:95]'
            A(f'v_mfma_f32_16x16x32_bf16 v[88:91], v[{64+4*k}:{67+4*k}], v[{rb}:{rb+3}], {c0}')
            A('s_waitcnt lgkmcnt(0)')
            A(f'v_mfma_f32_16x16x32_bf16 v[92:95], v[{64+4*k}:{67+4*k}], v[{rb+4}:{rb+7}], {c1}')
        A('s_nop 7')
        for t in range(2):
            A(f'v_mul_f32 v{4+t}, v80, v{88+4*t}')
        for r in range(1, 4):
            for t in range(2):
                A(f'v_fmac_f32 v{4+t}, v{80+2*r}, v{88+4*t+r}')
        self.sum_rows_multi([4, 5], [6, 7])
        A('s_cmp_eq_u32 s58, 0')
        A('s_cselect_b64 vcc, -1, 0')
        A('v_cndmask_b32 v6, v49, v48, vcc')
        A('v_cndmask_b32 v7, v53, v52, vcc')
        A('v_fmac_f32 v4, v29, v6')
        A('v_fmac_f32 v5, v29, v7')
        A('v_cmp_eq_u32 vcc, 1, v11')
        A('s_nop 1')
        A('v_cndmask_b32 v4, v4, v5, vcc')
        A('s_nop 1')
        A('v_mov_b32_dpp v6, v4 quad_perm:[1,0,3,2] row_mask:0xf bank_mask:0xf')
        A('v_mov_b32 v5, s35')
        A('v_mov_b32 v7, s35')
        A('s_lshl_b32 s42, s34, 15')
        A('s_lshl_b32 s43, s29, 12')
        A('s_add_u32 s42, s42, s43')
        A('s_lshl_b32 s43, s33, 10')
        A('s_add_u32 s42, s42, s43')
        A('s_lshl_b32 s43, s58, 9')
        A('s_add_u32 s42, s42, s43')
        A('s_lshl_b32 s43, s59, 8')
        A('s_add_u32 s42, s42, s43')
        A(f's_add_u32 s42, s42, {W_OUT}')
        A('v_lshlrev_b32 v1, 3, v0')
        A('v_add_u32 v1, s42, v1')
        A('v_and_b32 v2, 33, v0')
        A('v_cmp_eq_u32 vcc, 0, v2')
        A('s_and_saveexec_b64 s[56:57], vcc')
        A('global_store_dwordx4 v1, v[4:7], s[26:27] sc1')
        A('s_mov_b64 exec, 1')
        A(f'v_mov_b32 v1, {F_OUT}')
        A('v_mov_b32 v2, 1')
        A('ds_add_u32 v1, v2')
        A('s_mov_b64 exec, s[56:57]')
        self.stamp(13)

    def epilogue(self):
        A = self.A
        self.lab('L_fin')
        if self.stamps and self.dbg:
            A('s_mul_i32 s42, s2, 0x9d')
            A('s_and_b32 s42, s42, 31')
            A('s_cmp_lg_u32 s42, 0')
            A('s_cbranch_scc1 L_end')
            A('s_not_b32 s96, s96')
            A('v_writelane_b32 v10, s96, 0')
            lm = {0: 0, 1: 1, 2: 2, 3: 3, 5: 4, 8: 5, 9: 6, 11: 7, 12: 8}
            mm = {0: 0, 3: 9, 5: 10, 7: 11, 9: 12, 12: 13, 13: 14, 2: 15}
            A('v_mov_b32 v1, -1')
            A('s_cmp_eq_u32 s28, 4')
            A('s_cbranch_scc1 L_dbg_l')
            for k, v in mm.items():
                A(f's_mov_b32 s42, {v*4}')
                A(f'v_writelane_b32 v1, s42, {k}')
            A('s_branch L_dbg_s')
            self.lab('L_dbg_l')
            for k, v in lm.items():
                A(f's_mov_b32 s42, {v*4}')
                A(f'v_writelane_b32 v1, s42, {k}')
            self.lab('L_dbg_s')
            A('v_cmp_ne_u32 vcc, -1, v1')
            A('s_and_saveexec_b64 s[56:57], vcc')
            A('global_atomic_umax v1, v10, s[24:25]')
            A('s_mov_b64 exec, s[56:57]')
        elif self.stamps:
            A('v_writelane_b32 v10, s96, 0')
            A('s_mul_i32 s42, s2, 5')
            A('s_add_u32 s42, s42, s28')
            A('s_lshl_b32 s42, s42, 8')
            A(f's_add_u32 s42, s42, {W_STAMP}')
            A('v_lshlrev_b32 v1, 2, v0')
            A('v_add_u32 v1, s42, v1')
            A('global_store_dword v1, v10, s[26:27]')
        self.lab('L_end')
        A('s_endpgm')

    def build(self):
        self.header()
        self.prologue()
        self.main()
        self.A('s_branch L_fin')
        self.loader()
        self.epilogue()
        self.footer()
        return '\n'.join(self.L) + '\n'


if __name__ == '__main__':
    import argparse
    ap = argparse.ArgumentParser()
    ap.add_argument('-o', default='cdna_kernels/' + KN + '.s')
    ap.add_argument('--stamps', action='store_true')
    ap.add_argument('--dbg', action='store_true')
    ap.add_argument('--maxt', type=int, default=0)
    ap.add_argument('--depth', type=int, default=32)
    ap.add_argument('--rotmul', type=int, default=20)
    a = ap.parse_args()
    g = Gen(stamps=a.stamps or a.dbg, depth=a.depth, rotmul=a.rotmul, dbg=a.dbg, maxt=a.maxt)
    open(a.o, 'w').write(g.build())
    print('wrote', a.o)
```

```python
import sys

KN = 'gated_mix__sliding_block_cached__dense_activation_silu__decode'

L_K = 0
L_V = 65536
L_WQ = L_V + 49152
L_W1 = L_V + 40960
L_WO = 131072
L_W2 = 147456
L_X = 155648
L_G = 157696
L_QST = 158720
L_HST = 159744
L_F = 160768
F_PROG = L_F
F_QRDY = L_F + 256
F_PRDY = L_F + 272
F_CONS = L_F + 288
F_OUT = L_F + 292
F_MX = L_F + 320
LDS_BYTES = 163840

W_EPOCH = 0
W_Q = 0x10000
W_O = 0x50000
W_ML = 0xD0000
W_H = 0xE0000
W_OUT = 0x120000
W_B = 0x200000
W_STAMP = 0x10000000

P_X = 1
P_WQ = 5
P_W1 = 7
P_K = 23
P_W2 = 25
P_V0 = 25
P_WO0 = 41
NGROUPS = 45

SPIN_LIMIT = 1 << 18
SCALE_C = 0x3e0293ee
LOG2E = 0x3fb8aa3b


class Gen:
    def __init__(self, stamps=False, depth=32, rotmul=20, na_rounds=2, dbg=False, maxt=0):
        self.dbg = dbg
        self.maxt = maxt
        self.L = []
        self.stamps = stamps
        self.depth = depth
        self.rotmul = rotmul
        self.na = na_rounds
        self.uid = 0
        self.nstamp = 0
        self.stampnames = {}

    def A(self, s):
        self.L.append('  ' + s)

    def lab(self, s):
        self.L.append(s + ':')

    def newlab(self, p):
        self.uid += 1
        return f'L_{p}_{self.uid}'

    def stamp(self, idx, name=None):
        if not self.stamps:
            return
        self.A('s_memrealtime s[98:99]')
        self.A('s_waitcnt lgkmcnt(0)')
        self.A(f'v_writelane_b32 v10, s98, {idx}')

    def wait_prog(self, thr):
        l = self.newlab('wp')
        d = self.newlab('wpd')
        self.A(f's_cmp_ge_u32 s39, {thr}')
        self.A(f's_cbranch_scc1 {d}')
        self.A(f's_mov_b32 s63, {SPIN_LIMIT}')
        self.lab(l)
        self.A('ds_read_b32 v9, v15')
        self.A('s_sub_u32 s63, s63, 1')
        self.A(f's_cbranch_scc1 {d}')
        self.A('s_waitcnt lgkmcnt(0)')
        self.A('v_readfirstlane_b32 s39, v9')
        self.A(f's_cmp_ge_u32 s39, {thr}')
        self.A(f's_cbranch_scc0 {l}')
        self.lab(d)

    def spin_begin(self, name):
        l = self.newlab(name)
        d = self.newlab(name + 'd')
        self.A(f's_mov_b32 s63, {SPIN_LIMIT}')
        self.lab(l)
        self.A('s_sub_u32 s63, s63, 1')
        self.A(f's_cbranch_scc1 {d}')
        return l, d

    def sum_rows(self, v, t, op='v_add_f32'):
        A = self.A
        A(f'v_mov_b32 v{t}, v{v}')
        A('s_nop 1')
        A(f'v_permlane16_swap_b32 v{v}, v{t}')
        A('s_nop 1')
        A(f'{op} v{v}, v{v}, v{t}')
        A(f'v_mov_b32 v{t}, v{v}')
        A('s_nop 1')
        A(f'v_permlane32_swap_b32 v{v}, v{t}')
        A('s_nop 1')
        A(f'{op} v{v}, v{v}, v{t}')

    def sum_rows_multi(self, vs, ts, op='v_add_f32'):
        A = self.A
        for swap in ('v_permlane16_swap_b32', 'v_permlane32_swap_b32'):
            for v, t in zip(vs, ts):
                A(f'v_mov_b32 v{t}, v{v}')
            A('s_nop 1')
            for v, t in zip(vs, ts):
                A(f'{swap} v{v}, v{t}')
            A('s_nop 1')
            for v, t in zip(vs, ts):
                A(f'{op} v{v}, v{v}, v{t}')

    def header(self):
        L = self.L
        L.append(f'; @launch grid=(256,1,1) block=(320,1,1) lds={LDS_BYTES}')
        L.append('.amdgcn_target "amdgcn-amd-amdhsa--gfx950"')
        L.append('.text')
        L.append(f'.globl {KN}_kernel')
        L.append('.p2align 8')
        L.append(f'.type {KN}_kernel,@function')
        L.append(f'{KN}_kernel:')

    def footer(self):
        L = self.L
        L.append('.section .rodata,"a"')
        L.append('.p2align 6')
        L.append(f'.amdhsa_kernel {KN}_kernel')
        L.append('  .amdhsa_next_free_vgpr 256')
        L.append('  .amdhsa_next_free_sgpr 102')
        L.append('  .amdhsa_accum_offset 256')
        L.append('  .amdhsa_group_segment_fixed_size 0')
        L.append('  .amdhsa_kernarg_size 96')
        L.append('  .amdhsa_user_sgpr_count 2')
        L.append('  .amdhsa_user_sgpr_kernarg_segment_ptr 1')
        L.append('  .amdhsa_system_sgpr_workgroup_id_x 1')
        L.append('.end_amdhsa_kernel')

    def prologue(self):
        A = self.A
        if self.stamps or self.maxt:
            A('s_memrealtime s[96:97]')
        A('s_cmp_ge_u32 s2, 256')
        A('s_cbranch_scc1 L_end')
        A('s_load_dwordx16 s[4:19], s[0:1], 0')
        A('s_load_dwordx8 s[20:27], s[0:1], 64')
        A('v_lshrrev_b32 v1, 6, v0')
        A('v_and_b32 v0, 63, v0')
        A('s_and_b32 s29, s2, 7')
        A('v_readfirstlane_b32 s28, v1')
        A('s_lshr_b32 s30, s2, 3')
        A('s_lshr_b32 s31, s30, 4')
        A('s_and_b32 s32, s30, 15')
        A('s_lshr_b32 s33, s30, 3')
        A('s_and_b32 s34, s30, 7')
        A('s_lshr_b32 s40, s29, 1')
        A('s_mul_i32 s40, s40, 7')
        A('s_and_b32 s41, s29, 1')
        A('s_lshl_b32 s42, s41, 2')
        A('s_add_u32 s40, s40, s42')
        A('s_sub_u32 s41, 4, s41')
        if self.stamps:
            A('v_mov_b32 v10, 0')
        A('s_cmp_eq_u32 s28, 4')
        A('s_cbranch_scc1 L_loader')

    def loader(self):
        A = self.A
        self.lab('L_loader')
        A('v_lshrrev_b32 v4, 4, v0')
        A('v_and_b32 v5, 15, v0')
        for q in range(4):
            A(f'v_add_u32 v6, {4*q}, v4')
            A('v_xor_b32 v6, v6, v5')
            A('v_lshlrev_b32 v6, 4, v6')
            A(f'v_lshl_add_u32 v{20+q}, v4, 8, v6')
        for q in range(2):
            A(f'v_add_u32 v6, {4*q}, v4')
            A('v_lshlrev_b32 v6, 1, v6')
            A('v_xor_b32 v6, v6, v5')
            A('v_lshlrev_b32 v6, 4, v6')
            A(f'v_lshl_add_u32 v{24+q}, v4, 8, v6')
        A('v_lshrrev_b32 v4, 3, v0')
        A('v_and_b32 v5, 7, v0')
        A('v_and_b32 v6, 2, v4')
        A('v_xor_b32 v5, v5, v6')
        A('v_lshlrev_b32 v5, 4, v5')
        A('v_xor_b32 v6, 64, v5')
        A('v_lshl_add_u32 v26, v4, 13, v5')
        A('v_lshl_add_u32 v27, v4, 13, v6')
        A('v_lshl_add_u32 v28, v4, 10, v5')
        A('v_lshl_add_u32 v29, v4, 10, v6')
        A('v_mul_u32_u24 v7, 3584, v4')
        A('v_add_u32 v30, v7, v5')
        A('v_add_u32 v31, v7, v6')
        A('v_lshlrev_b32 v3, 4, v0')
        A('v_lshlrev_b32 v15, 2, v0')
        A(f'v_add_u32 v15, {F_PROG}, v15')
        A('s_lshl_b32 s43, s31, 3')
        A('s_add_u32 s43, s43, s29')
        A('s_lshl_b32 s43, s43, 23')
        A('s_lshl_b32 s44, s32, 16')
        A('s_add_u32 s43, s43, s44')
        A('s_add_u32 s43, s43, 0x700000')
        A('s_lshl_b32 s44, s33, 20')
        A('s_lshl_b32 s45, s29, 10')
        A('s_add_u32 s44, s44, s45')
        A('s_lshl_b32 s45, s34, 7')
        A('s_add_u32 s44, s44, s45')
        A('s_lshl_b32 s46, s29, 2')
        A('s_add_u32 s46, s46, s33')
        A('s_lshl_b32 s46, s46, 17')
        A('s_add_u32 s46, s46, s45')
        A('s_add_u32 s47, s40, s33')
        A('s_lshl_b32 s47, s47, 16')
        A('s_add_u32 s47, s47, s45')
        A('s_cmp_lt_u32 s33, s41')
        A(f's_cselect_b32 s78, {63*1024+128}, 0')
        A('s_cselect_b32 s47, s47, 0')
        A('s_and_b32 s48, s30, 3')
        A('s_lshr_b32 s49, s30, 2')
        A(f's_mul_i32 s49, s49, {64*3584}')
        A('s_cmp_lt_u32 s48, s41')
        A(f's_cselect_b32 s82, {63*3584+128}, 0')
        A('s_cselect_b32 s50, 1, 0')
        A('s_add_u32 s48, s48, s40')
        A('s_lshl_b32 s48, s48, 7')
        A('s_add_u32 s48, s48, s49')
        A('s_mul_i32 s48, s48, s50')
        A(f's_mul_i32 s51, s2, {self.rotmul}')
        A('s_and_b32 s51, s51, 60')
        A('s_lshl_b32 s51, s51, 10')
        A('s_waitcnt lgkmcnt(0)')

        def srd(n, lo, off, size):
            if off is None:
                A(f's_mov_b32 s{n}, s{lo}')
                A(f's_mov_b32 s{n+1}, s{lo+1}')
            else:
                A(f's_add_u32 s{n}, s{lo}, {off}')
                A(f's_addc_u32 s{n+1}, s{lo+1}, 0')
            if size is not None:
                A(f's_mov_b32 s{n+2}, {size}')
            A(f's_mov_b32 s{n+3}, 0x20000')

        groups = []
        nt = ' nt'

        def g_kv(srdn, ldsbase, vbase, nvar, pre_first=None):
            for gi in range(16):
                pre = []
                if gi == 0 and pre_first:
                    pre += pre_first
                pre += [f's_add_u32 s52, s51, {gi*4096}', 's_and_b32 s52, s52, 0xffff',
                        f's_mov_b32 m0, {ldsbase + gi*4096}', 's_nop 0']
                body = [f'buffer_load_dwordx4 v{vbase + (i % nvar)}, s[{srdn}:{srdn+3}], s52 offen offset:{i*1024}{nt} lds'
                        for i in range(4)]
                groups.append([pre, body, None])

        def g_rows(srdn, ldsbase, v, npieces, stride):
            for g0 in range(0, npieces, 4):
                body = []
                for p in range(g0, g0 + 4):
                    body.append(f's_mov_b32 m0, {ldsbase + p*1024}')
                    body.append(f's_mov_b32 s52, {p*8*stride}')
                    body.append(f'buffer_load_dwordx4 v{v + (p & 1)}, s[{srdn}:{srdn+3}], s52 offen{nt} lds')
                groups.append([[], body, None])

        groups.append([[f's_mov_b32 m0, {L_X}', 's_nop 0'],
                       ['buffer_load_dwordx4 v3, s[84:87], 0 offen lds',
                        'buffer_load_dwordx4 v3, s[84:87], 0 offen offset:1024 lds',
                        f's_mov_b32 m0, {L_G}', 's_nop 0',
                        'buffer_load_dwordx4 v3, s[88:91], 0 offen lds'], None])
        g_rows(68, L_WQ, 26, 16, 8192)
        g_rows(80, L_W1, 30, 8, 3584)
        g_kv(60, L_K, 20, 4)
        g_rows(76, L_W2, 28, 8, 1024)
        g_kv(64, L_V, 24, 2)
        g_rows(72, L_WO, 28, 16, 1024)
        assert len(groups) == NGROUPS
        cons_at = 25 + 10
        cnt = lambda g: sum(1 for x in g[1] if x.startswith('buffer_load'))
        ends = []
        tot = 0
        for g in groups:
            tot += cnt(g)
            ends.append(tot)

        setup = {
            0: lambda: (srd(84, 4, None, 2048), srd(88, 20, None, 1024)),
            1: lambda: srd(68, 10, 's44', 127 * 8192 + 128),
            5: lambda: srd(80, 16, 's48', None),
            7: lambda: srd(60, 6, 's43', 65536),
            23: lambda: srd(76, 18, 's47', None),
            25: lambda: srd(64, 8, 's43', 65536),
            41: lambda: srd(72, 12, 's46', 127 * 1024 + 128),
        }
        issued = 0
        landed = 0
        barrier_done = False

        def publish(n_landed):
            nonlocal landed
            k = landed
            while k < NGROUPS and ends[k] <= n_landed:
                k += 1
            if k > landed:
                landed = k
                A(f'v_mov_b32 v8, {k}')
                A('ds_write_b32 v15, v8')
                if self.stamps and k in (1, 5, 7, 23, 25, 33, 41, 45):
                    self.stamp({1: 2, 5: 3, 7: 4, 23: 5, 25: 6, 33: 7, 41: 8, 45: 9}[k])

        self.stamp(1)
        for gi, g in enumerate(groups):
            c = cnt(g)
            if issued + c > self.depth:
                if not barrier_done:
                    A('s_barrier')
                    barrier_done = True
                w = self.depth - c
                A(f's_waitcnt vmcnt({w})')
                publish(issued - w)
            if gi in setup:
                setup[gi]()
            if gi == cons_at:
                A(f'v_mov_b32 v7, {F_CONS}')
                l, d = self.spin_begin('cons')
                A('ds_read_b32 v9, v7')
                A('s_waitcnt lgkmcnt(0)')
                A('v_readfirstlane_b32 s53, v9')
                A('s_cmp_ge_u32 s53, 4')
                A(f's_cbranch_scc0 {l}')
                self.lab(d)
            for x in g[0]:
                A(x)
            for x in g[1]:
                A(x)
            issued += c
        A('v_lshrrev_b32 v4, 1, v0')
        A('v_lshlrev_b32 v4, 10, v4')
        A('v_and_b32 v5, 1, v0')
        A('v_lshl_add_u32 v4, v5, 4, v4')
        A('s_lshl_b32 s54, s29, 15')
        A('s_lshl_b32 s55, s31, 9')
        A('s_add_u32 s54, s54, s55')
        A('s_lshl_b32 s55, s32, 5')
        A('s_add_u32 s54, s54, s55')
        A(f's_add_u32 s54, s54, {W_OUT}')
        A('v_add_u32 v4, s54, v4')
        A('s_lshl_b32 s54, s31, 10')
        A('s_lshl_b32 s55, s29, 7')
        A('s_add_u32 s54, s54, s55')
        A('s_lshl_b32 s55, s32, 3')
        A('s_add_u32 s54, s54, s55')
        A('v_lshlrev_b32 v5, 2, v5')
        A('v_add_u32 v5, s54, v5')
        A(f's_load_dword s35, s[26:27], {W_EPOCH}')
        w = min(self.depth, issued)
        while w > 0:
            w = max(0, w - 4)
            A(f's_waitcnt vmcnt({w})')
            publish(issued - w)
        assert landed == NGROUPS
        A('s_waitcnt lgkmcnt(0)')
        A('s_add_u32 s35, s35, 1')
        A(f'v_mov_b32 v7, {F_OUT}')
        l, d = self.spin_begin('outw')
        A('ds_read_b32 v9, v7')
        A('s_waitcnt lgkmcnt(0)')
        A('v_readfirstlane_b32 s53, v9')
        if self.maxt:
            A('s_lshr_b32 s95, s53, 8')
            A('s_and_b32 s53, s53, 0xff')
        A('s_cmp_ge_u32 s53, 4')
        A(f's_cbranch_scc0 {l}')
        self.lab(d)
        self.stamp(11)
        A(f's_mov_b32 s53, {SPIN_LIMIT}')
        l = self.newlab('fin')
        d = self.newlab('find')
        self.lab(l)
        A('global_load_dwordx4 v[16:19], v4, s[26:27] sc1')
        A('s_waitcnt vmcnt(0)')
        A('v_cmp_ne_u32 vcc, s35, v17')
        A('v_cmp_ne_u32 s[56:57], s35, v19')
        A('s_or_b64 vcc, vcc, s[56:57]')
        A(f's_cbranch_vccz {d}')
        A('s_sub_u32 s53, s53, 1')
        A(f's_cbranch_scc0 {l}')
        self.lab(d)
        self.stamp(12)
        for v in (16, 18):
            A(f'v_add_f32_dpp v{v}, v{v}, v{v} quad_perm:[2,3,0,1] row_mask:0xf bank_mask:0xf')
        A('s_nop 0')
        for v in (16, 18):
            A(f'v_add_f32_dpp v{v}, v{v}, v{v} row_ror:4 row_mask:0xf bank_mask:0xf')
        A('s_nop 0')
        for v in (16, 18):
            A(f'v_add_f32_dpp v{v}, v{v}, v{v} row_ror:8 row_mask:0xf bank_mask:0xf')
        self.sum_rows_multi([16, 18], [20, 21])
        A('v_cvt_pk_bf16_f32 v16, v16, v18')
        if self.maxt:
            A('s_memrealtime s[98:99]')
            A('s_waitcnt lgkmcnt(0)')
            A('s_sub_u32 s98, s98, s96')
            A(f's_cmp_gt_u32 s98, {self.maxt}')
            A('s_cbranch_scc0 L_tok')
            A('s_cmp_lg_u32 s95, 0')
            A('s_cbranch_scc1 L_tok')
            A('v_mov_b32 v16, 0x7fc07fc0')
            self.lab('L_tok')
        A('v_cmp_gt_u32 vcc, 2, v0')
        A('s_and_saveexec_b64 s[56:57], vcc')
        A('global_store_dword v5, v16, s[22:23]')
        A('s_mov_b64 exec, s[56:57]')
        A('s_cmp_lg_u32 s2, 0')
        A('s_cbranch_scc1 L_fin')
        A('v_mov_b32 v6, 0')
        A('v_mov_b32 v7, s35')
        A('v_cmp_eq_u32 vcc, 0, v0')
        A('s_and_saveexec_b64 s[56:57], vcc')
        A(f'global_store_dword v6, v7, s[26:27] offset:{W_EPOCH} sc1')
        A('s_mov_b64 exec, s[56:57]')
        A('s_branch L_fin')

    def main(self):
        A = self.A
        A('v_lshrrev_b32 v11, 4, v0')
        A('v_and_b32 v12, 15, v0')
        A('v_bfe_u32 v13, v0, 2, 2')
        A('v_and_b32 v14, 3, v0')
        A(f'v_mov_b32 v15, {F_PROG}')
        A('s_mov_b32 s39, 0')
        A('s_getreg_b32 s36, hwreg(HW_REG_XCC_ID, 0, 4)')
        A('s_lshr_b32 s58, s28, 1')
        A('s_and_b32 s59, s28, 1')
        A('s_cmp_lg_u32 s28, 0')
        A('s_cbranch_scc1 L_noinit')
        A('v_mov_b32 v1, 0')
        A('v_lshlrev_b32 v2, 2, v0')
        A(f'v_add_u32 v3, {F_PROG}, v2')
        A('ds_write_b32 v3, v1')
        A('v_cmp_gt_u32 vcc, 16, v0')
        A('s_and_saveexec_b64 s[56:57], vcc')
        A(f'ds_write_b32 v3, v1 offset:256')
        A('v_mov_b32 v1, -1')
        A(f'ds_write_b32 v3, v1 offset:320')
        A('s_mov_b64 exec, s[56:57]')
        self.lab('L_noinit')
        A('s_lshl_b32 s42, s29, 15')
        A('s_lshl_b32 s43, s30, 10')
        A('s_add_u32 s42, s42, s43')
        A(f's_add_u32 s60, s42, {W_O}')
        A('s_lshl_b32 s43, s28, 8')
        A('s_add_u32 s43, s43, s60')
        A('v_lshlrev_b32 v1, 4, v0')
        A('v_add_u32 v1, s43, v1')
        A('s_lshl_b32 s42, s29, 14')
        A('s_and_b32 s43, s30, 3')
        A('s_lshl_b32 s43, s43, 12')
        A('s_add_u32 s42, s42, s43')
        A('s_lshr_b32 s43, s30, 2')
        A('s_lshl_b32 s43, s43, 9')
        A('s_add_u32 s42, s42, s43')
        A(f's_add_u32 s61, s42, {W_H}')
        A('s_lshl_b32 s43, s28, 6')
        A('s_add_u32 s43, s43, s61')
        A('v_bfe_u32 v2, v0, 2, 1')
        A('v_lshlrev_b32 v2, 8, v2')
        A('v_lshl_add_u32 v2, v14, 4, v2')
        A('v_add_u32 v2, s43, v2')
        A('v_cmp_gt_u32 vcc, 16, v0')
        A('s_nop 1')
        A('v_cndmask_b32 v1, v2, v1, vcc')
        A('s_lshl_b32 s42, s29, 10')
        A('s_lshl_b32 s43, s28, 8')
        A('s_add_u32 s42, s42, s43')
        A('s_lshl_b32 s43, s30, 3')
        A('s_add_u32 s42, s42, s43')
        A(f's_add_u32 s62, s42, {W_ML}')
        A('v_mov_b32 v3, s62')
        A('v_mov_b32 v4, -1')
        A('v_mov_b32 v5, -1')
        A('v_mov_b32 v6, -1')
        A('v_mov_b32 v7, -1')
        A(f'v_add_u32 v2, {W_B}, v1')
        A(f'v_add_u32 v8, {W_B}, v3')
        A('s_waitcnt lgkmcnt(0)')
        A(f's_load_dword s35, s[26:27], {W_EPOCH}')
        A('v_cmp_gt_u32 vcc, 24, v0')
        A('s_and_saveexec_b64 s[56:57], vcc')
        A('global_store_dwordx4 v1, v[4:7], s[26:27]')
        A('global_store_dwordx4 v2, v[4:7], s[26:27] sc1')
        A('s_mov_b64 exec, 1')
        A('global_store_dwordx2 v3, v[4:5], s[26:27]')
        A('global_store_dwordx2 v8, v[4:5], s[26:27] sc1')
        A('s_mov_b64 exec, s[56:57]')
        A('v_lshl_add_u32 v1, v11, 3, v13')
        A('v_lshlrev_b32 v1, 7, v1')
        A('v_lshl_add_u32 v1, v14, 3, v1')
        A('v_lshrrev_b32 v2, 1, v13')
        A('v_and_b32 v3, 1, v11')
        A('v_lshl_or_b32 v2, v3, 1, v2')
        A('v_xor_b32 v3, s28, v2')
        A('v_lshl_add_u32 v3, v3, 5, v1')
        A(f'v_add_u32 v16, {L_WQ}, v3')
        A(f'v_add_u32 v17, {L_W1}, v3')
        A('s_lshl_b32 s42, s59, 1')
        A('v_xor_b32 v3, s42, v2')
        A('v_lshl_add_u32 v3, v3, 5, v1')
        A(f'v_add_u32 v18, {L_WO}, v3')
        A('v_xor_b32 v19, 32, v18')
        A('v_and_b32 v1, 1, v12')
        A('v_lshlrev_b32 v1, 10, v1')
        A('v_lshl_add_u32 v1, v11, 4, v1')
        A(f'v_add_u32 v1, {L_X}, v1')
        A('s_lshl_b32 s42, s33, 8')
        A('v_add_u32 v20, s42, v1')
        A('s_lshr_b32 s42, s30, 2')
        A('s_lshl_b32 s42, s42, 7')
        A('v_add_u32 v21, s42, v1')
        A('v_xor_b32 v1, v11, v12')
        A('s_lshl_b32 s42, s28, 14')
        A('v_lshlrev_b32 v2, 8, v12')
        A('v_add_u32 v2, s42, v2')
        for k in range(4):
            A(f'v_xor_b32 v3, {4*k}, v1')
            A(f'v_lshl_add_u32 v{22+k}, v3, 4, v2')
        A('v_lshl_add_u32 v1, v11, 2, v13')
        A('v_and_b32 v2, 7, v1')
        A('v_lshlrev_b32 v1, 8, v1')
        A('v_lshl_add_u32 v1, v14, 3, v1')
        A(f'v_add_u32 v1, {L_V}, v1')
        A('s_lshl_b32 s42, s28, 1')
        A('v_xor_b32 v2, s42, v2')
        A('v_lshl_add_u32 v26, v2, 5, v1')
        A('v_xor_b32 v27, 32, v26')
        A('s_barrier')
        self.stamp(1)

        self.wait_prog(P_X)
        A('v_lshlrev_b32 v1, 4, v0')
        A('s_lshl_b32 s42, s58, 10')
        A('v_add_u32 v2, s42, v1')
        A(f'v_add_u32 v2, {L_X}, v2')
        A(f'v_add_u32 v1, {L_G}, v1')
        A('ds_read_b128 v[32:35], v2')
        A('ds_read_b128 v[36:39], v1')
        for k in range(4):
            A(f'ds_read_b128 v[{40+4*k}:{43+4*k}], v20 offset:{64*k}')
        for k in range(2):
            A(f'ds_read_b128 v[{56+4*k}:{59+4*k}], v21 offset:{64*k}')
        A('v_mov_b32 v28, 0')
        A('s_waitcnt lgkmcnt(6)')
        for k in range(4):
            A(f'v_dot2c_f32_bf16 v28, v{32+k}, v{36+k}')
        A('s_nop 2')
        A('v_add_f32_dpp v28, v28, v28 quad_perm:[1,0,3,2] row_mask:0xf bank_mask:0xf')
        A('s_nop 1')
        A('v_add_f32_dpp v28, v28, v28 quad_perm:[2,3,0,1] row_mask:0xf bank_mask:0xf')
        A('s_nop 1')
        A('v_add_f32_dpp v28, v28, v28 row_ror:4 row_mask:0xf bank_mask:0xf')
        A('s_nop 1')
        A('v_add_f32_dpp v28, v28, v28 row_ror:8 row_mask:0xf bank_mask:0xf')
        self.sum_rows(28, 1)
        A(f's_mov_b32 s42, {LOG2E}')
        A('v_mul_f32 v28, s42, v28')
        A('v_sub_f32 v28, 0, v28')
        A('v_exp_f32 v28, v28')
        A('s_nop 0')
        A('v_add_f32 v28, 1.0, v28')
        A('v_rcp_f32 v28, v28')
        A('s_nop 0')
        A('v_sub_f32 v29, 1.0, v28')
        self.stamp(2)

        self.wait_prog(P_WQ)
        for k in range(4):
            for eta in range(2):
                A(f'ds_read_b64_tr_b16 v[{64+4*k+2*eta}:{65+4*k+2*eta}], v16 offset:{k*4096+eta*512}')
        for k in range(4):
            A(f's_waitcnt lgkmcnt({6-2*k})')
            c = '0' if k == 0 else 'v[80:83]'
            A(f'v_mfma_f32_16x16x32_bf16 v[80:83], v[{64+4*k}:{67+4*k}], v[{40+4*k}:{43+4*k}], {c}')
        A('s_lshl_b32 s42, s29, 14')
        A('s_lshl_b32 s43, s33, 11')
        A('s_add_u32 s42, s42, s43')
        A('s_lshl_b32 s43, s34, 8')
        A('s_add_u32 s42, s42, s43')
        A('s_lshl_b32 s43, s28, 6')
        A('s_add_u32 s42, s42, s43')
        A(f's_add_u32 s42, s42, {W_Q}')
        A('v_lshlrev_b32 v1, 13, v12')
        A('v_lshl_add_u32 v1, v11, 4, v1')
        A('v_add_u32 v1, s42, v1')
        A(f'v_add_u32 v2, {W_B}, v1')
        A('s_waitcnt lgkmcnt(0)')
        A('s_add_u32 s35, s35, 1')
        A('s_lshl_b32 s43, s36, 24')
        A('s_xor_b32 s43, s43, s35')
        A('s_nop 3')
        A('v_cvt_pk_bf16_f32 v4, v80, v81')
        A('v_mov_b32 v5, s35')
        A('v_cvt_pk_bf16_f32 v6, v82, v83')
        A('v_mov_b32 v7, s43')
        A('s_waitcnt vmcnt(0)')
        A('v_cmp_gt_u32 vcc, 2, v12')
        A('s_and_saveexec_b64 s[56:57], vcc')
        A('global_store_dwordx4 v1, v[4:7], s[26:27]')
        A('global_store_dwordx4 v2, v[4:7], s[26:27] sc1')
        A('s_mov_b64 exec, s[56:57]')
        self.stamp(3)

        self.wait_prog(P_W1)
        for k in range(2):
            for eta in range(2):
                A(f'ds_read_b64_tr_b16 v[{64+4*k+2*eta}:{65+4*k+2*eta}], v17 offset:{k*4096+eta*512}')
        for k in range(2):
            A(f's_waitcnt lgkmcnt({2-2*k})')
            c = '0' if k == 0 else 'v[80:83]'
            A(f'v_mfma_f32_16x16x32_bf16 v[80:83], v[{64+4*k}:{67+4*k}], v[{56+4*k}:{59+4*k}], {c}')
        A(f'v_mov_b32 v1, {F_CONS}')
        A('v_mov_b32 v2, 1')
        A('s_mov_b64 s[56:57], exec')
        A('s_mov_b64 exec, 1')
        A('ds_add_u32 v1, v2')
        A('s_mov_b64 exec, s[56:57]')
        A('s_lshl_b32 s42, s28, 6')
        A('s_add_u32 s42, s42, s61')
        A('v_lshlrev_b32 v1, 8, v12')
        A('v_lshl_add_u32 v1, v11, 4, v1')
        A('v_add_u32 v1, s42, v1')
        A(f'v_add_u32 v2, {W_B}, v1')
        A('s_and_b32 s42, s30, 3')
        A('s_cmp_lt_u32 s42, s41')
        A('s_cbranch_scc0 L_nohpub')
        A('v_cmp_gt_u32 vcc, 2, v12')
        A('s_and_saveexec_b64 s[56:57], vcc')
        A('global_store_dwordx4 v1, v[80:83], s[26:27]')
        A('global_store_dwordx4 v2, v[80:83], s[26:27] sc1')
        A('s_mov_b64 exec, s[56:57]')
        self.lab('L_nohpub')
        self.stamp(4)

        A('s_lshl_b32 s42, s29, 14')
        A('s_lshl_b32 s43, s31, 13')
        A('s_add_u32 s42, s42, s43')
        A('s_lshl_b32 s43, s28, 9')
        A('s_add_u32 s42, s42, s43')
        A(f's_add_u32 s42, s42, {W_Q}')
        A('v_lshrrev_b32 v1, 5, v0')
        A('v_lshlrev_b32 v1, 11, v1')
        A('v_and_b32 v2, 31, v0')
        A('v_lshl_add_u32 v1, v2, 4, v1')
        A('v_add_u32 v30, s42, v1')
        A('s_mov_b32 s44, 0')
        lq = self.newlab('qpoll')
        dq = self.newlab('qdone')
        self.lab(lq)
        A(f's_cmp_lt_u32 s44, {self.na}')
        A('s_cselect_b32 s45, 0, s44')
        A('s_and_b32 s45, s45, 1')
        A(f's_mul_i32 s45, s45, {W_B}')
        A('v_add_u32 v1, s45, v30')
        A('v_add_u32 v2, 4096, v1')
        A('global_load_dwordx4 v[32:35], v1, s[26:27] sc1')
        A('global_load_dwordx4 v[36:39], v2, s[26:27] sc1')
        A('s_waitcnt vmcnt(0)')
        A('v_xor_b32 v33, s35, v33')
        A('v_xor_b32 v35, s35, v35')
        A('v_xor_b32 v37, s35, v37')
        A('v_xor_b32 v39, s35, v39')
        A('v_or_b32 v3, v35, v39')
        A('v_and_b32 v3, 0xf0ffffff, v3')
        A('v_or3_b32 v3, v3, v33, v37')
        A('v_cmp_ne_u32 vcc, 0, v3')
        A(f's_cbranch_vccz {dq}')
        A('s_add_u32 s44, s44, 1')
        A(f's_cmp_lt_u32 s44, {SPIN_LIMIT}')
        A(f's_cbranch_scc1 {lq}')
        self.lab(dq)
        A('s_lshl_b32 s43, s36, 24')
        A('v_cmp_ne_u32 vcc, s43, v35')
        A('v_cmp_ne_u32 s[56:57], s43, v39')
        A('s_or_b64 vcc, vcc, s[56:57]')
        A('s_cmp_eq_u64 vcc, 0')
        A('s_cselect_b32 s45, 3, 1')
        for src in (32, 36):
            for d in range(2):
                A(f'v_lshlrev_b32 v{40 + (src-32) + 2*d}, 16, v{src + 2*d}')
                A(f'v_and_b32 v{41 + (src-32) + 2*d}, 0xffff0000, v{src + 2*d}')
        for k in range(4):
            A(f'v_add_f32 v{40+k}, v{40+k}, v{44+k}')
        for k in range(4):
            A(f'v_mov_b32 v{44+k}, v{40+k}')
        A('s_nop 1')
        for k in range(4):
            A(f'v_permlane32_swap_b32 v{40+k}, v{44+k}')
        A('s_nop 1')
        for k in range(4):
            A(f'v_add_f32 v{40+k}, v{40+k}, v{44+k}')
        A('v_cvt_pk_bf16_f32 v4, v40, v41')
        A('v_cvt_pk_bf16_f32 v5, v42, v43')
        A('v_and_b32 v2, 31, v0')
        A('v_lshlrev_b32 v2, 3, v2')
        A('s_lshl_b32 s42, s28, 8')
        A(f's_add_u32 s42, s42, {L_QST}')
        A('v_add_u32 v2, s42, v2')
        A('ds_write_b64 v2, v[4:5]')
        A('s_lshl_b32 s42, s28, 2')
        A(f's_add_u32 s42, s42, {F_QRDY}')
        A('v_mov_b32 v1, s42')
        A('v_mov_b32 v2, s45')
        A('s_waitcnt lgkmcnt(0)')
        A('s_mov_b64 s[56:57], exec')
        A('s_mov_b64 exec, 1')
        A('ds_write_b32 v1, v2')
        A('s_mov_b64 exec, s[56:57]')
        self.stamp(5)
        A(f'v_mov_b32 v1, {F_QRDY}')
        A('s_mov_b32 s45, 1')
        l, d = self.spin_begin('qrdy')
        A('ds_read_b128 v[4:7], v1')
        A('s_waitcnt lgkmcnt(0)')
        A('v_and_b32 v4, v4, v5')
        A('v_and_b32 v6, v6, v7')
        A('v_and_b32 v4, v4, v6')
        A('s_nop 0')
        A('v_readfirstlane_b32 s45, v4')
        A('s_bitcmp1_b32 s45, 0')
        A(f's_cbranch_scc0 {l}')
        self.lab(d)
        A('s_bitcmp1_b32 s45, 1')
        A(f's_cselect_b32 s37, 0, {W_B}')
        A('s_lshl_b32 s42, s29, 14')
        A('s_lshl_b32 s43, s33, 12')
        A('s_add_u32 s42, s42, s43')
        A(f's_add_u32 s42, s42, {W_H}')
        A('s_add_u32 s42, s42, s37')
        A('v_lshlrev_b32 v31, 4, v0')
        A('v_add_u32 v31, s42, v31')
        for k in range(4):
            A(f'global_load_dwordx4 v[{208+4*k}:{211+4*k}], v31, s[26:27] offset:{1024*k} sc1')
        A('v_lshlrev_b32 v1, 8, v14')
        A('v_lshl_add_u32 v1, v11, 4, v1')
        A(f'v_add_u32 v1, {L_QST}, v1')
        for k in range(4):
            A(f'ds_read_b128 v[{32+4*k}:{35+4*k}], v1 offset:{64*k}')
        self.stamp(6)

        self.wait_prog(P_K)
        A('s_waitcnt lgkmcnt(0)')
        for t in range(4):
            for k in range(4):
                A(f'ds_read_b128 v[{64+16*t+4*k}:{67+16*t+4*k}], v{22+k} offset:{t*4096}')
        for t in range(4):
            A(f's_waitcnt lgkmcnt({12-4*t})')
            for k in range(4):
                c = '0' if k == 0 else f'v[{48+4*t}:{51+4*t}]'
                A(f'v_mfma_f32_16x16x32_bf16 v[{48+4*t}:{51+4*t}], v[{64+16*t+4*k}:{67+16*t+4*k}], v[{32+4*k}:{35+4*k}], {c}')
        A('s_nop 7')
        A('v_max3_f32 v1, v48, v49, v50')
        A('v_max3_f32 v2, v51, v52, v53')
        A('v_max3_f32 v3, v54, v55, v56')
        A('v_max3_f32 v4, v57, v58, v59')
        A('v_max3_f32 v1, v1, v60, v61')
        A('v_max3_f32 v2, v2, v62, v63')
        A('v_max3_f32 v1, v1, v3, v4')
        A('v_max_f32 v1, v1, v2')
        self.sum_rows(1, 2, 'v_max_f32')
        A('s_lshl_b32 s42, s28, 2')
        A(f's_add_u32 s42, s42, {F_MX}')
        A('v_lshlrev_b32 v2, 4, v14')
        A('v_add_u32 v3, s42, v2')
        A(f'v_add_u32 v2, {F_MX}, v2')
        A('v_cmp_gt_u32 vcc, 4, v0')
        A('s_and_saveexec_b64 s[56:57], vcc')
        A('ds_write_b32 v3, v1')
        A('s_mov_b64 exec, s[56:57]')
        l, d = self.spin_begin('mx')
        A('ds_read_b128 v[4:7], v2')
        A('s_waitcnt lgkmcnt(0)')
        A('v_max_u32 v8, v4, v5')
        A('v_max3_u32 v8, v8, v6, v7')
        A('v_cmp_eq_u32 vcc, -1, v8')
        A(f's_cbranch_vccnz {l}')
        self.lab(d)
        A('v_max3_f32 v1, v4, v5, v6')
        A('v_max_f32 v1, v1, v7')
        A(f's_mov_b32 s42, {SCALE_C}')
        A('v_mul_f32 v30, s42, v1')
        for r in range(16):
            A(f'v_fma_f32 v{48+r}, v{48+r}, s42, -v30')
        for r in range(16):
            A(f'v_exp_f32 v{48+r}, v{48+r}')
        A('s_nop 0')
        for u in range(2):
            for q in range(4):
                A(f'v_cvt_pk_bf16_f32 v{64+4*u+q}, v{48+8*u+2*q}, v{49+8*u+2*q}')
        A('v_lshlrev_b32 v1, 4, v0')
        A('s_lshl_b32 s42, s28, 14')
        A('v_add_u32 v2, s42, v1')
        A('ds_write_b128 v2, v[64:67]')
        A('ds_write_b128 v2, v[68:71] offset:1024')
        A('s_lshl_b32 s42, s28, 2')
        A(f's_add_u32 s42, s42, {F_PRDY}')
        A('v_mov_b32 v3, s42')
        A('v_mov_b32 v4, 1')
        A('s_waitcnt lgkmcnt(0)')
        A('s_mov_b64 s[56:57], exec')
        A('s_mov_b64 exec, 1')
        A('ds_write_b32 v3, v4')
        A('s_mov_b64 exec, s[56:57]')
        self.stamp(7)
        A(f'v_mov_b32 v3, {F_PRDY}')
        l, d = self.spin_begin('prdy')
        A('ds_read_b128 v[4:7], v3')
        A('s_waitcnt lgkmcnt(0)')
        A('v_and_b32 v4, v4, v5')
        A('v_and_b32 v6, v6, v7')
        A('v_and_b32 v4, v4, v6')
        A('s_nop 0')
        A('v_readfirstlane_b32 s45, v4')
        A('s_cmp_eq_u32 s45, 1')
        A(f's_cbranch_scc0 {l}')
        self.lab(d)
        for U in range(8):
            A(f'ds_read_b128 v[{64+4*U}:{67+4*U}], v1 offset:{(U>>1)*16384 + (U&1)*1024}')
        for r in range(4):
            A(f'v_mov_b32 v{32+r}, 0x3f803f80')
            A(f'v_mov_b32 v{36+r}, 0')
            A(f'v_mov_b32 v{40+r}, 0')
            A(f'v_mov_b32 v{44+r}, 0')
        A('s_waitcnt lgkmcnt(0)')
        for U in range(8):
            A(f'v_mfma_f32_16x16x32_bf16 v[36:39], v[32:35], v[{64+4*U}:{67+4*U}], v[36:39]')
        self.stamp(8)

        for U in range(8):
            self.wait_prog(P_V0 + 2 * (U + 1))
            base = 96 + 8 * (U & 1)
            for ds in range(2):
                for eta in range(2):
                    A(f'ds_read_b64_tr_b16 v[{base+4*ds+2*eta}:{base+4*ds+2*eta+1}], v{26+ds} offset:{U*8192+eta*4096}')
            A('s_waitcnt lgkmcnt(2)')
            A(f'v_mfma_f32_16x16x32_bf16 v[40:43], v[{base}:{base+3}], v[{64+4*U}:{67+4*U}], v[40:43]')
            A('s_waitcnt lgkmcnt(0)')
            A(f'v_mfma_f32_16x16x32_bf16 v[44:47], v[{base+4}:{base+7}], v[{64+4*U}:{67+4*U}], v[44:47]')
        self.stamp(9)
        A('v_lshlrev_b32 v1, 8, v14')
        A('v_bfe_u32 v2, v0, 2, 1')
        A('v_lshl_add_u32 v1, v2, 5, v1')
        A('v_lshl_add_u32 v1, v11, 3, v1')
        A('s_lshl_b32 s42, s28, 6')
        A('s_add_u32 s42, s42, s60')
        A('s_add_u32 s42, s42, s37')
        A('v_add_u32 v1, s42, v1')
        A('v_cmp_eq_u32 vcc, 1, v2')
        A('s_add_u32 s43, s62, s37')
        A('v_mov_b32 v3, s43')
        A('s_nop 3')
        for r in range(4):
            A(f'v_cndmask_b32 v{4+r}, v{40+r}, v{44+r}, vcc')
        A('v_cvt_pk_bf16_f32 v4, v4, v5')
        A('v_cvt_pk_bf16_f32 v5, v6, v7')
        A('v_mov_b32 v6, v30')
        A('v_mov_b32 v7, v36')
        A('v_cmp_gt_u32 vcc, 8, v12')
        A('v_cmp_eq_u32 s[44:45], s28, v0')
        A('s_mov_b64 s[56:57], exec')
        A('s_cmp_eq_u32 s37, 0')
        A('s_cbranch_scc0 L_opub_far')
        A('s_mov_b64 exec, vcc')
        A('global_store_dwordx2 v1, v[4:5], s[26:27]')
        A('s_mov_b64 exec, s[44:45]')
        A('global_store_dwordx2 v3, v[6:7], s[26:27]')
        A('s_branch L_opub_done')
        self.lab('L_opub_far')
        A('s_mov_b64 exec, vcc')
        A('global_store_dwordx2 v1, v[4:5], s[26:27] sc1')
        A('s_mov_b64 exec, s[44:45]')
        A('global_store_dwordx2 v3, v[6:7], s[26:27] sc1')
        self.lab('L_opub_done')
        A('s_mov_b64 exec, s[56:57]')
        self.stamp(10)

        for r in range(4):
            A(f'v_mov_b32 v{48+r}, 0')
            A(f'v_mov_b32 v{52+r}, 0')
        A('s_cmp_lt_u32 s33, s41')
        A('s_cbranch_scc0 L_noffn')
        A(f's_mov_b32 s44, {SPIN_LIMIT}')
        l = self.newlab('hpoll')
        d = self.newlab('hdone')
        self.lab(l)
        A('s_waitcnt vmcnt(0)')
        A('v_max3_u32 v1, v208, v209, v210')
        for k in range(211, 223, 2):
            A(f'v_max3_u32 v1, v1, v{k}, v{k+1}')
        A('v_max_u32 v1, v1, v223')
        A('v_cmp_eq_u32 vcc, -1, v1')
        A(f's_cbranch_vccz {d}')
        for k in range(4):
            A(f'global_load_dwordx4 v[{208+4*k}:{211+4*k}], v31, s[26:27] offset:{1024*k} sc1')
        A('s_sub_u32 s44, s44, 1')
        A(f's_cbranch_scc0 {l}')
        self.lab(d)
        for q in range(4):
            A(f'v_add_f32 v{208+q}, v{208+q}, v{212+q}')
            A(f'v_add_f32 v{216+q}, v{216+q}, v{220+q}')
        for q in range(4):
            A(f'v_add_f32 v{208+q}, v{208+q}, v{216+q}')
            A(f'v_mov_b32 v{212+q}, v{208+q}')
        A('s_nop 1')
        for q in range(4):
            A(f'v_permlane32_swap_b32 v{208+q}, v{212+q}')
        A('s_nop 1')
        A(f's_mov_b32 s42, {LOG2E}')
        for q in range(4):
            A(f'v_add_f32 v{208+q}, v{208+q}, v{212+q}')
        for q in range(4):
            A(f'v_mul_f32 v{212+q}, s42, v{208+q}')
            A(f'v_sub_f32 v{212+q}, 0, v{212+q}')
        for q in range(4):
            A(f'v_exp_f32 v{212+q}, v{212+q}')
        A('s_nop 0')
        for q in range(4):
            A(f'v_add_f32 v{212+q}, 1.0, v{212+q}')
        for q in range(4):
            A(f'v_rcp_f32 v{212+q}, v{212+q}')
        A('s_nop 0')
        for q in range(4):
            A(f'v_mul_f32 v{208+q}, v{208+q}, v{212+q}')
        A('v_cvt_pk_bf16_f32 v4, v208, v209')
        A('v_cvt_pk_bf16_f32 v5, v210, v211')
        A('v_and_b32 v1, 31, v0')
        A('v_lshlrev_b32 v1, 3, v1')
        A('s_lshl_b32 s42, s28, 8')
        A(f's_add_u32 s42, s42, {L_HST}')
        A('v_add_u32 v1, s42, v1')
        A('ds_write_b64 v1, v[4:5]')
        A('v_and_b32 v1, 1, v12')
        A('v_lshlrev_b32 v1, 7, v1')
        A('v_lshl_add_u32 v1, v11, 4, v1')
        A('v_add_u32 v1, s42, v1')
        A('s_waitcnt lgkmcnt(0)')
        A('ds_read_b128 v[56:59], v1')
        A('ds_read_b128 v[60:63], v1 offset:64')
        self.wait_prog(P_W2)
        for t in range(2):
            for k in range(2):
                for eta in range(2):
                    rb = 96 + 8*t + 4*k + 2*eta
                    A(f'ds_read_b64_tr_b16 v[{rb}:{rb+1}], v{18+t} offset:{L_W2-L_WO + k*4096 + eta*512}')
        A('s_waitcnt lgkmcnt(0)')
        for k in range(2):
            for t in range(2):
                A(f'v_mfma_f32_16x16x32_bf16 v[{48+4*t}:{51+4*t}], v[{56+4*k}:{59+4*k}], v[{96+8*t+4*k}:{99+8*t+4*k}], v[{48+4*t}:{51+4*t}]')
        self.lab('L_noffn')
        self.stamp(11)

        A('s_lshl_b32 s42, s29, 15')
        A('s_lshl_b32 s43, s58, 14')
        A('s_add_u32 s42, s42, s43')
        A('s_lshl_b32 s43, s33, 8')
        A('s_add_u32 s42, s42, s43')
        A(f's_add_u32 s42, s42, {W_O}')
        A('s_add_u32 s42, s42, s37')
        A('v_lshlrev_b32 v1, 10, v12')
        A('v_lshl_add_u32 v1, v11, 4, v1')
        A('v_add_u32 v1, s42, v1')
        A('s_lshl_b32 s42, s29, 10')
        A('s_lshl_b32 s43, s33, 8')
        A('s_add_u32 s42, s42, s43')
        A('s_lshl_b32 s43, s58, 7')
        A('s_add_u32 s42, s42, s43')
        A(f's_add_u32 s42, s42, {W_ML}')
        A('s_add_u32 s42, s42, s37')
        A('v_lshlrev_b32 v2, 5, v11')
        A('v_add_u32 v2, s42, v2')
        A(f's_mov_b32 s44, {SPIN_LIMIT}')
        l = self.newlab('opoll')
        d = self.newlab('odone')
        self.lab(l)
        for k in range(4):
            A(f'global_load_dwordx4 v[{64+4*k}:{67+4*k}], v1, s[26:27] offset:{64*k} sc1')
        A('global_load_dwordx4 v[80:83], v2, s[26:27] sc1')
        A('global_load_dwordx4 v[84:87], v2, s[26:27] offset:16 sc1')
        A('s_waitcnt vmcnt(0)')
        A('v_max3_u32 v3, v64, v65, v66')
        for k in range(67, 87, 2):
            A(f'v_max3_u32 v3, v3, v{k}, v{k+1}')
        A('v_max_u32 v3, v3, v87')
        A('v_cmp_eq_u32 vcc, -1, v3')
        A(f's_cbranch_vccz {d}')
        A('s_sub_u32 s44, s44, 1')
        A(f's_cbranch_scc0 {l}')
        self.lab(d)
        self.stamp(12)
        A('v_max3_f32 v3, v80, v82, v84')
        A('v_max_f32 v3, v3, v86')
        self.sum_rows(3, 4, 'v_max_f32')
        for r in range(4):
            A(f'v_sub_f32 v{80+2*r}, v{80+2*r}, v3')
        for r in range(4):
            A(f'v_exp_f32 v{80+2*r}, v{80+2*r}')
        A('s_nop 0')
        A('v_mul_f32 v3, v80, v81')
        for r in range(1, 4):
            A(f'v_fmac_f32 v3, v{80+2*r}, v{81+2*r}')
        self.sum_rows(3, 4)
        A('v_rcp_f32 v3, v3')
        A('s_nop 0')
        A('v_mul_f32 v3, v3, v28')
        for r in range(4):
            A(f'v_mul_f32 v{80+2*r}, v{80+2*r}, v3')
        for k in range(4):
            self.wait_prog(P_WO0 + k + 1)
            for t in range(2):
                for eta in range(2):
                    rb = 96 + 8*(k & 1) + 4*t + 2*eta
                    A(f'ds_read_b64_tr_b16 v[{rb}:{rb+1}], v{18+t} offset:{k*4096 + eta*512}')
            rb = 96 + 8*(k & 1)
            A('s_waitcnt lgkmcnt(2)')
            c0 = '0' if k == 0 else 'v[88:91]'
            c1 = '0' if k == 0 else 'v[92:95]'
            A(f'v_mfma_f32_16x16x32_bf16 v[88:91], v[{64+4*k}:{67+4*k}], v[{rb}:{rb+3}], {c0}')
            A('s_waitcnt lgkmcnt(0)')
            A(f'v_mfma_f32_16x16x32_bf16 v[92:95], v[{64+4*k}:{67+4*k}], v[{rb+4}:{rb+7}], {c1}')
        A('s_nop 7')
        for t in range(2):
            A(f'v_mul_f32 v{4+t}, v80, v{88+4*t}')
        for r in range(1, 4):
            for t in range(2):
                A(f'v_fmac_f32 v{4+t}, v{80+2*r}, v{88+4*t+r}')
        self.sum_rows_multi([4, 5], [6, 7])
        A('s_cmp_eq_u32 s58, 0')
        A('s_cselect_b64 vcc, -1, 0')
        A('v_cndmask_b32 v6, v49, v48, vcc')
        A('v_cndmask_b32 v7, v53, v52, vcc')
        A('v_fmac_f32 v4, v29, v6')
        A('v_fmac_f32 v5, v29, v7')
        A('v_cmp_eq_u32 vcc, 1, v11')
        A('s_nop 1')
        A('v_cndmask_b32 v4, v4, v5, vcc')
        A('s_nop 1')
        A('v_mov_b32_dpp v6, v4 quad_perm:[1,0,3,2] row_mask:0xf bank_mask:0xf')
        A('v_mov_b32 v5, s35')
        A('v_mov_b32 v7, s35')
        A('s_lshl_b32 s42, s34, 15')
        A('s_lshl_b32 s43, s29, 12')
        A('s_add_u32 s42, s42, s43')
        A('s_lshl_b32 s43, s33, 10')
        A('s_add_u32 s42, s42, s43')
        A('s_lshl_b32 s43, s58, 9')
        A('s_add_u32 s42, s42, s43')
        A('s_lshl_b32 s43, s59, 8')
        A('s_add_u32 s42, s42, s43')
        A(f's_add_u32 s42, s42, {W_OUT}')
        A('v_lshlrev_b32 v1, 3, v0')
        A('v_add_u32 v1, s42, v1')
        A('v_and_b32 v2, 33, v0')
        A('v_cmp_eq_u32 vcc, 0, v2')
        A('s_and_saveexec_b64 s[56:57], vcc')
        A('global_store_dwordx4 v1, v[4:7], s[26:27] sc1')
        A('s_mov_b64 exec, 1')
        A(f'v_mov_b32 v1, {F_OUT}')
        if self.maxt:
            A('s_lshr_b32 s42, s37, 13')
            A('s_add_u32 s42, s42, 1')
            A('v_mov_b32 v2, s42')
        else:
            A('v_mov_b32 v2, 1')
        A('ds_add_u32 v1, v2')
        A('s_mov_b64 exec, s[56:57]')
        self.stamp(13)

    def epilogue(self):
        A = self.A
        self.lab('L_fin')
        if self.stamps and self.dbg:
            A('s_mul_i32 s42, s2, 0x9d')
            A('s_and_b32 s42, s42, 31')
            A('s_cmp_lg_u32 s42, 0')
            A('s_cbranch_scc1 L_end')
            A('s_not_b32 s96, s96')
            A('v_writelane_b32 v10, s96, 0')
            lm = {0: 0, 1: 1, 2: 2, 3: 3, 5: 4, 8: 5, 9: 6, 11: 7, 12: 8}
            mm = {0: 0, 3: 9, 5: 10, 7: 11, 9: 12, 12: 13, 13: 14, 2: 15}
            A('v_mov_b32 v1, -1')
            A('s_cmp_eq_u32 s28, 4')
            A('s_cbranch_scc1 L_dbg_l')
            for k, v in mm.items():
                A(f's_mov_b32 s42, {v*4}')
                A(f'v_writelane_b32 v1, s42, {k}')
            A('s_branch L_dbg_s')
            self.lab('L_dbg_l')
            for k, v in lm.items():
                A(f's_mov_b32 s42, {v*4}')
                A(f'v_writelane_b32 v1, s42, {k}')
            self.lab('L_dbg_s')
            A('v_cmp_ne_u32 vcc, -1, v1')
            A('s_and_saveexec_b64 s[56:57], vcc')
            A('global_atomic_umax v1, v10, s[24:25]')
            A('s_mov_b64 exec, s[56:57]')
        elif self.stamps:
            A('v_writelane_b32 v10, s96, 0')
            A('s_mul_i32 s42, s2, 5')
            A('s_add_u32 s42, s42, s28')
            A('s_lshl_b32 s42, s42, 8')
            A(f's_add_u32 s42, s42, {W_STAMP}')
            A('v_lshlrev_b32 v1, 2, v0')
            A('v_add_u32 v1, s42, v1')
            A('global_store_dword v1, v10, s[26:27]')
        self.lab('L_end')
        A('s_endpgm')

    def build(self):
        self.header()
        self.prologue()
        self.main()
        self.A('s_branch L_fin')
        self.loader()
        self.epilogue()
        self.footer()
        return '\n'.join(self.L) + '\n'


if __name__ == '__main__':
    import argparse
    ap = argparse.ArgumentParser()
    ap.add_argument('-o', default='cdna_kernels/' + KN + '.s')
    ap.add_argument('--stamps', action='store_true')
    ap.add_argument('--dbg', action='store_true')
    ap.add_argument('--maxt', type=int, default=0)
    ap.add_argument('--depth', type=int, default=32)
    ap.add_argument('--rotmul', type=int, default=20)
    a = ap.parse_args()
    g = Gen(stamps=a.stamps or a.dbg, depth=a.depth, rotmul=a.rotmul, dbg=a.dbg, maxt=a.maxt)
    open(a.o, 'w').write(g.build())
    print('wrote', a.o)
```
